```python
import torch

def _softmax(x, axis=-1):
    return torch.softmax(x, dim=axis)
def _gelu(x):
    return torch.nn.functional.gelu(x, approximate="tanh")
def _silu(x):
    return torch.nn.functional.silu(x)
def _sigmoid(x):
    return torch.sigmoid(x)
def _layernorm(x, axis=-1, eps=1e-5):
    m = x.mean(dim=axis, keepdim=True)
    v = x.var(dim=axis, keepdim=True, unbiased=False)
    return (x - m) / torch.sqrt(v + eps)
def _scatter_add(tgt, idx, src, axis=0):
    return tgt.clone().index_add_(axis, idx, src)
def _segment_sum(src, seg, n):
    out = torch.zeros((n,) + src.shape[1:], dtype=src.dtype)
    return out.index_add_(0, seg, src)
def _pad(x, pw):
    flat = tuple(v for pair in reversed(pw) for v in pair)
    return torch.nn.functional.pad(x, flat)

kernel_name = 'gated_mix__grouped_kv_mqa__dense_activation_mish__prompt'

def setup_inputs():

    _w = (lambda a: (lambda t: t.to(torch.bfloat16) if t.is_floating_point() else t)(torch.as_tensor(a)))
    def _A_setup():
        B, S, D, H = 1, 2048, 512, 32
        Dh = D // H
        return {
            "x": _w((lambda *s: torch.randn(*s, dtype=torch.bfloat16) * 0.05)(B, S, D)),
            "wq": _w((lambda *s: torch.randn(*s, dtype=torch.bfloat16) * 0.8)(D, H * Dh)),
            "wk": _w((lambda *s: torch.randn(*s, dtype=torch.bfloat16) * 0.8)(D, Dh)),
            "wv": _w((lambda *s: torch.randn(*s, dtype=torch.bfloat16) * 0.05)(D, Dh)),
            "wo": _w((lambda *s: torch.randn(*s, dtype=torch.bfloat16) * 0.05)(H * Dh, D)),
        }
    _A_in = _A_setup()

    def _B_setup():
        B, S, D, F = 1, 2048, 512, 1792
        return {
            "x": _w((lambda *s: torch.randn(*s, dtype=torch.bfloat16) * 0.05)(B, S, D)),
            "w1": _w((lambda *s: torch.randn(*s, dtype=torch.bfloat16) * 3.2)(D, F) * (D ** -0.5)),
            "b1": _w((lambda *s: torch.randn(*s, dtype=torch.bfloat16) * 0.05)(F)),
            "w2": _w((lambda *s: torch.randn(*s, dtype=torch.bfloat16) * 0.05)(F, D) * (F ** -0.5)),
        }
    _B_in = _B_setup()

    return {
        "A_x": _A_in["x"],
        "A_wq": _A_in["wq"],
        "A_wk": _A_in["wk"],
        "A_wv": _A_in["wv"],
        "A_wo": _A_in["wo"],
        "B_x": _B_in["x"],
        "B_w1": _B_in["w1"],
        "B_b1": _B_in["b1"],
        "B_w2": _B_in["w2"],
        "gate_w": _w((lambda *s: torch.randn(*s, dtype=torch.bfloat16) * 0.05)(512) * 16.0),
    }

def reference(A_x, A_wq, A_wk, A_wv, A_wo, B_x, B_w1, B_b1, B_w2, gate_w):
    def _A_ref(x, wq, wk, wv, wo):
        B, S, D = x.shape
        H = 32
        Dh = D // H
        q = (lambda x, *d: x.permute(*d))((x @ wq).reshape(B, S, H, Dh), 0, 2, 1, 3)
        k = x @ wk
        v = x @ wv
        scores = torch.einsum("bhqd,bkd->bhqk", q, k) * (Dh ** -0.5)
        p = _softmax(scores, axis=-1)
        o = torch.einsum("bhqk,bkd->bhqd", p, v)
        return (lambda x, *d: x.permute(*d))(o, 0, 2, 1, 3).reshape(B, S, H * Dh) @ wo

    def _B_ref(x, w1, b1, w2):
        h = torch.einsum("bsd,df->bsf", x, w1) + b1
        sp = torch.log1p(torch.exp(-torch.abs(h))) + torch.where(h > 0, h, torch.zeros_like(h))
        act = h * torch.tanh(sp)
        return torch.einsum("bsf,fd->bsd", act, w2)

    x = A_x
    g = _sigmoid((x * gate_w).sum(-1, keepdims=True))
    a = _A_ref(x, A_wq, A_wk, A_wv, A_wo)
    b = _B_ref(x, B_w1, B_b1, B_w2)
    return g * a + (1 - g) * b
```

```python
class A:
    def __init__(self):
        self.l = []
    def __call__(self, s):
        for line in s.strip("\n").split("\n"):
            line = line.rstrip()
            if not line.strip():
                continue
            if line.strip().endswith(":") or line.strip().startswith("."):
                self.l.append(line.strip())
            else:
                self.l.append("    " + line.strip())
    def c(self, s):
        self.l.append("    ; " + s)
    def text(self):
        return "\n".join(self.l) + "\n"

def vr(b, n=1):
    return f"v{b}" if n == 1 else f"v[{b}:{b+n-1}]"
def sr(b, n=1):
    return f"s{b}" if n == 1 else f"s[{b}:{b+n-1}]"

MFMA = "v_mfma_f32_32x32x16_bf16"

def mfma(d, a, b, c):
    cs = c if isinstance(c, str) else vr(c, 16)
    return f"{MFMA} {vr(d,16)}, {vr(a,4)}, {vr(b,4)}, {cs}"

def srd(a, dst, lo, nbytes):
    a(f"s_mov_b32 s{dst}, s{lo}")
    a(f"s_mov_b32 s{dst+1}, s{lo+1}")
    a(f"s_mov_b32 s{dst+2}, {hex(nbytes)}")
    a(f"s_mov_b32 s{dst+3}, 0x00020000")

def desc(name, vgprs, sgprs=96):
    acc = (vgprs + 3) // 4 * 4
    return f""".amdhsa_kernel {name}
  .amdhsa_next_free_vgpr {acc}
  .amdhsa_next_free_sgpr {sgprs}
  .amdhsa_accum_offset {acc}
  .amdhsa_group_segment_fixed_size 0
  .amdhsa_kernarg_size 104
  .amdhsa_user_sgpr_count 2
  .amdhsa_user_sgpr_kernarg_segment_ptr 1
  .amdhsa_system_sgpr_workgroup_id_x 1
.end_amdhsa_kernel
"""

QF = 0x000000
OF = 0x200000
BF = 0x400000
AF = 0x600000
W2F = 0xD00000
WOF = 0xEC0000
KF = 0xF40000
VF = 0xF50000
GG = 0xF60000
WS_BYTES = 0x1000000
LOG2E = 1.4426950408889634

import struct
def f2u(x):
    return struct.unpack("<I", struct.pack("<f", x))[0]
def fhex(x):
    return hex(f2u(x))
```

```python
from asmlib import *

S_X, S_WQ, S_W1, S_WS, S_B1, S_GT = 4, 8, 12, 16, 20, 24
sWAVE, sTT, sJ, sTB = 28, 29, 30, 31
sXs, sPs, sFs, sT0 = 32, 33, 34, 35
sXd, sPd, sFd, sT1, sT2, sT3, sK0, sK1 = 58, 59, 60, 61, 62, 63, 64, 65
sP2s, sP2d = 66, 67
vL = 1
vXdma = 2
vPdma = 6
vFdma = 7
vXrd = 8
vPrd = 12
vFrd = 13
vT = 17
ACC = 20
XF = 100
WF = 108
EP = 148
K1_VGPRS = 200
K1_LDS = 144 * 1088

XBASE, FBASE, PBASE = 0, 65536, 131072
P0B, P1B, WKB, WVB, GTB = 65536, 81920, 98304, 98304 + 16384 + 128, 132096


def dma(a, m0base, m0imm, voff, srd_, soff, soffimm=None, tmp=sT1):
    if m0imm:
        a(f"s_add_u32 m0, s{m0base}, {m0imm}")
    else:
        a(f"s_mov_b32 m0, s{m0base}")
    if soffimm:
        a(f"s_add_u32 s{tmp}, s{soff}, {soffimm}")
        so = tmp
    else:
        a("s_nop 0")
        so = soff
    a(f"buffer_load_dwordx4 v{voff}, s[{srd_}:{srd_+3}], s{so} offen lds")


def common_addr(a):
    a(f"v_lshrrev_b32 v{vT}, 3, v{vL}")
    a(f"v_lshrrev_b32 v{vT+1}, 4, v{vL}")
    a(f"v_and_b32 v{vT+2}, 7, v{vL}")
    for q in range(4):
        d = vXdma + q
        a(f"v_add_u32 v{d}, {(4*q)&7}, v{vT+1}")
        a(f"v_xor_b32 v{d}, v{d}, v{vT+2}")
        a(f"v_lshlrev_b32 v{d}, 4, v{d}")
        a(f"v_add_u32 v{EP}, {8*q}, v{vT}")
        a(f"v_lshlrev_b32 v{EP}, 10, v{EP}")
        a(f"v_add_u32 v{d}, v{d}, v{EP}")
    a(f"v_and_b32 v{vT}, 31, v{vL}")
    a(f"v_lshrrev_b32 v{vT+1}, 5, v{vL}")
    a(f"v_lshrrev_b32 v{vT+2}, 1, v{vT}")
    a(f"v_and_b32 v{vT+2}, 7, v{vT+2}")
    a(f"v_xor_b32 v{vT+2}, v{vT+2}, v{vT+1}")
    a(f"v_lshlrev_b32 v{vT}, 7, v{vT}")
    a(f"s_lshl_b32 s{sT0}, s{sWAVE}, 12")
    a(f"v_add_u32 v{vT}, s{sT0}, v{vT}")
    for s in range(4):
        d = vXrd + s
        a(f"v_xor_b32 v{d}, {2*s}, v{vT+2}")
        a(f"v_lshlrev_b32 v{d}, 4, v{d}")
        a(f"v_add_u32 v{d}, v{d}, v{vT}")
    a(f"v_lshrrev_b32 v{vT}, 2, v{vL}")
    a(f"v_lshlrev_b32 v{vT}, 10, v{vT}")
    a(f"v_and_b32 v{vT+1}, 3, v{vL}")
    a(f"v_lshlrev_b32 v{vT+1}, 4, v{vT+1}")
    a(f"v_add_u32 v{vPdma}, v{vT}, v{vT+1}")
    a(f"v_lshrrev_b32 v{vT}, 5, v{vL}")
    a(f"v_lshlrev_b32 v{vT}, 3, v{vT}")
    a(f"v_bfe_u32 v{vT+1}, v{vL}, 2, 2")
    a(f"v_add_u32 v{vT}, v{vT}, v{vT+1}")
    a(f"v_bfe_u32 v{vT+2}, v{vL}, 4, 1")
    a(f"v_and_b32 v{EP}, 3, v{vL}")
    a(f"v_lshlrev_b32 v{EP}, 3, v{EP}")
    a(f"v_lshl_add_u32 v{EP}, v{vT+2}, 5, v{EP}")
    a(f"v_lshl_add_u32 v{vPrd}, v{vT}, 6, v{EP}")
    a(f"s_lshl_b32 s{sXs}, s{sTB}, 15")
    a(f"s_lshl_b32 s{sXd}, s{sWAVE}, 12")


def x_dmas(c):
    b = c & 3
    out = []
    for q in range(4):
        out.append(lambda a, q=q: dma(a, sXd, XBASE + b * 16384 + q * 1024, vXdma + q, S_X, sXs, c * 128))
    return out


def kloop(a, nchunk_dma, chunk_dmas, reads, mfmas, pre_issued):
    n = nchunk_dma
    a(f"s_waitcnt vmcnt({3*n})")
    a("s_barrier")
    rd = reads(0)
    for grp in rd:
        for r in grp:
            a(r)
    cnt = [len(x) for x in rd]
    pending = []
    for g in range(32):
        c, s = g >> 2, g & 3
        nxt = reads(g + 1) if g < 31 else [[] for _ in range(5)]
        mf = mfmas(g)
        for t in range(5):
            later = sum(cnt[t + 1:]) + sum(len(x) for x in nxt[:t])
            a(f"s_waitcnt lgkmcnt({later})")
            a(mf[t])
            if t == 0 and s == 3 and c < 7:
                left = {0: 2 * n, 6: 0}.get(c, n)
                a(f"s_waitcnt vmcnt({left})")
                a("s_barrier")
                if 1 <= c <= 4:
                    pending = chunk_dmas(c + 3)
            for r in nxt[t]:
                a(r)
            if pending and not (t == 0 and s == 3):
                pending.pop(0)(a)
        assert not (s == 2 and pending), "dma left"
    a("s_nop 7")
    a("s_nop 7")


def q_epilogue(a, acc, head0_imm):
    for r in range(16):
        a(f"v_mul_f32 v{acc+r}, s{sK1}, v{acc+r}")
    for r in range(8):
        a(f"v_cvt_pk_bf16_f32 v{EP+r}, v{acc+2*r}, v{acc+2*r+1}")
    a(f"buffer_store_dwordx4 v[{EP}:{EP+3}], v{vT}, s[{S_WS}:{S_WS+3}], s{sT2} offen offset:{head0_imm}")
    a(f"buffer_store_dwordx4 v[{EP+4}:{EP+7}], v{vT}, s[{S_WS}:{S_WS+3}], s{sT2} offen offset:{head0_imm+1024}")


def k1_main(a):
    a("L_k1_main:")
    srd(a, S_W1, 48, 512 * 3584)
    srd(a, S_B1, 50, 3584)
    common_addr(a)
    a(f"v_add_u32 v{vPrd}, {PBASE}, v{vPrd}")
    a(f"v_lshl_add_u32 v{EP+1}, v{vT}, 8, v{EP}")
    a(f"v_add_u32 v{EP+1}, {FBASE}, v{EP+1}")
    for t in range(4):
        a(f"v_xor_b32 v{vFrd+t}, {t}, v{vT+1}")
        a(f"v_lshl_add_u32 v{vFrd+t}, v{vFrd+t}, 6, v{EP+1}")
    a(f"v_lshrrev_b32 v{vT}, 4, v{vL}")
    a(f"v_and_b32 v{vT+1}, 15, v{vL}")
    a(f"v_lshlrev_b32 v{vT+2}, 2, v{vT}")
    a(f"v_xor_b32 v{vT+1}, v{vT+1}, v{vT+2}")
    a(f"v_lshlrev_b32 v{vT+1}, 4, v{vT+1}")
    a(f"v_mul_u32_u24 v{vT}, 3584, v{vT}")
    a(f"v_add_u32 v{vFdma}, v{vT}, v{vT+1}")
    a(f"s_lshl_b32 s{sPs}, s{sWAVE}, 14")
    a(f"s_lshl_b32 s{sT0}, s{sJ}, 6")
    a(f"s_add_u32 s{sPs}, s{sPs}, s{sT0}")
    a(f"s_lshl_b32 s{sPd}, s{sWAVE}, 10")
    a(f"s_add_u32 s{sPd}, s{sPd}, {PBASE}")
    a(f"s_mul_i32 s{sFs}, s{sWAVE}, {16*3584}")
    a(f"s_lshl_b32 s{sT0}, s{sJ}, 8")
    a(f"s_add_u32 s{sFs}, s{sFs}, s{sT0}")
    a(f"s_lshl_b32 s{sFd}, s{sWAVE}, 12")
    a(f"s_add_u32 s{sFd}, s{sFd}, {FBASE}")

    def chunk_dmas(c):
        b = c & 3
        out = x_dmas(c)
        out.append(lambda a: dma(a, sPd, b * 4096, vPdma, S_WQ, sPs, c * 65536))
        for d in range(4):
            out.append(lambda a, d=d: dma(a, sFd, b * 16384 + d * 1024, vFdma, S_W1, sFs, (c * 64 + d * 4) * 3584))
        return out

    a(f"v_lshrrev_b32 v{vT}, 5, v{vL}")
    a(f"v_lshlrev_b32 v{vT}, 3, v{vT}")
    for u in range(4):
        for q in range(4):
            d = WF + (u * 4 + q) * 2
            a(f"buffer_load_dwordx2 v[{d}:{d+1}], v{vT}, s[{S_B1}:{S_B1+3}], s{sT0} offen offset:{64*u+16*q}")
    for c in range(4):
        for f in chunk_dmas(c):
            f(a)
    a("s_waitcnt vmcnt(36)")
    for u in range(4):
        for q in range(4):
            d = WF + (u * 4 + q) * 2
            o = ACC + 16 * (1 + u) + 4 * q
            a(f"v_lshlrev_b32 v{o}, 16, v{d}")
            a(f"v_and_b32 v{o+1}, 0xffff0000, v{d}")
            a(f"v_lshlrev_b32 v{o+2}, 16, v{d+1}")
            a(f"v_and_b32 v{o+3}, 0xffff0000, v{d+1}")

    def reads(g):
        c, s = g >> 2, g & 3
        b, p = c & 3, g & 1
        w = WF + p * 20
        grp = [[f"ds_read_b128 v[{XF+4*p}:{XF+4*p+3}], v{vXrd+s} offset:{b*16384}",
                f"ds_read_b64_tr_b16 v[{w}:{w+1}], v{vPrd} offset:{b*4096+s*1024}",
                f"ds_read_b64_tr_b16 v[{w+2}:{w+3}], v{vPrd} offset:{b*4096+s*1024+256}"]]
        for t in range(4):
            ww = w + 4 * (1 + t)
            grp.append([f"ds_read_b64_tr_b16 v[{ww}:{ww+1}], v{vFrd+t} offset:{b*16384+s*4096}",
                        f"ds_read_b64_tr_b16 v[{ww+2}:{ww+3}], v{vFrd+t} offset:{b*16384+s*4096+1024}"])
        return grp

    def mfmas(g):
        p = g & 1
        out = []
        for t in range(5):
            cc = "0" if (g == 0 and t == 0) else ACC + 16 * t
            out.append(mfma(ACC + 16 * t, WF + p * 20 + 4 * t, XF + 4 * p, cc))
        return out

    kloop(a, 9, chunk_dmas, reads, mfmas, 4)

    a(f"v_lshlrev_b32 v{vT}, 4, v{vL}")
    a(f"s_mov_b32 s{sK0}, {fhex(LOG2E)}")
    a(f"s_mov_b32 s{sK1}, {fhex(0.25*LOG2E)}")
    a(f"s_lshl_b32 s{sT2}, s{sTB}, 15")
    a(f"s_lshl_b32 s{sT0}, s{sJ}, 11")
    a(f"s_add_u32 s{sT2}, s{sT2}, s{sT0}")
    q_epilogue(a, ACC, 0)
    a(f"s_mul_i32 s{sT3}, s{sTB}, {112*1024}")
    a(f"s_lshl_b32 s{sT0}, s{sJ}, 13")
    a(f"s_add_u32 s{sT3}, s{sT3}, s{sT0}")
    a(f"s_add_u32 s{sT3}, s{sT3}, {AF}")
    T1, T2 = EP + 8, EP + 16
    for u in range(4):
        acc = ACC + 16 * (1 + u)
        pk = EP + 24 + (u & 1) * 8
        for half in range(2):
            x0 = acc + 8 * half
            for i in range(8):
                a(f"v_mul_f32 v{T1+i}, s{sK0}, v{x0+i}")
            for i in range(8):
                a(f"v_exp_f32 v{T1+i}, v{T1+i}")
            for i in range(8):
                a(f"v_add_f32 v{T2+i}, 2.0, v{T1+i}")
            for i in range(8):
                a(f"v_fma_f32 v{T2+i}, v{T1+i}, v{T2+i}, 2.0")
            for i in range(8):
                a(f"v_rcp_f32 v{T2+i}, v{T2+i}")
            for i in range(8):
                a(f"v_mul_f32 v{T2+i}, v{x0+i}, v{T2+i}")
            for i in range(8):
                a(f"v_fma_f32 v{x0+i}, v{T2+i}, -2.0, v{x0+i}")
            for i in range(4):
                a(f"v_cvt_pk_bf16_f32 v{pk+4*half+i}, v{x0+2*i}, v{x0+2*i+1}")
        if u == 2:
            a(f"s_add_u32 s{sT3}, s{sT3}, 4096")
        o = (u & 1) * 2048
        a(f"buffer_store_dwordx4 v[{pk}:{pk+3}], v{vT}, s[{S_WS}:{S_WS+3}], s{sT3} offen offset:{o}")
        a(f"buffer_store_dwordx4 v[{pk+4}:{pk+7}], v{vT}, s[{S_WS}:{S_WS+3}], s{sT3} offen offset:{o+1024}")
    a("s_endpgm")


def k1_special(a):
    a("L_k1_special:")
    srd(a, S_W1, 40, 16384)
    srd(a, S_B1, 42, 16384)
    srd(a, S_GT, 54, 1024)
    common_addr(a)
    vKV, vGT, vP1 = vFrd, vFrd + 1, vFrd + 2
    a(f"v_and_b32 v{EP+1}, 3, v{vL}")
    a(f"v_lshlrev_b32 v{EP+1}, 3, v{EP+1}")
    a(f"v_lshl_add_u32 v{EP+1}, v{vT}, 5, v{EP+1}")
    a(f"v_mul_u32_u24 v{EP+2}, {WVB-WKB}, v{vT+2}")
    a(f"v_add_u32 v{EP+1}, v{EP+1}, v{EP+2}")
    a(f"v_add_u32 v{vKV}, {WKB}, v{EP+1}")
    a(f"v_lshrrev_b32 v{EP+1}, 5, v{vL}")
    a(f"v_lshlrev_b32 v{EP+1}, 4, v{EP+1}")
    a(f"v_add_u32 v{vGT}, {GTB}, v{EP+1}")
    a(f"v_add_u32 v{vP1}, {P1B}, v{vPrd}")
    a(f"v_add_u32 v{vPrd}, {P0B}, v{vPrd}")
    a(f"s_lshl_b32 s{sPs}, s{sWAVE}, 14")
    a(f"s_add_u32 s{sP2s}, s{sPs}, 960")
    a(f"s_add_u32 s{sPs}, s{sPs}, 896")
    a(f"s_lshl_b32 s{sPd}, s{sWAVE}, 10")
    a(f"s_add_u32 s{sP2d}, s{sPd}, {P1B}")
    a(f"s_add_u32 s{sPd}, s{sPd}, {P0B}")
    a(f"v_lshlrev_b32 v{vFdma}, 4, v{vL}")
    a(f"s_lshl_b32 s{sFs}, s{sWAVE}, 12")
    a(f"s_add_u32 s{sFd}, s{sFs}, {WKB}")
    a(f"s_add_u32 s{sT2}, s{sFs}, {WVB}")
    for d in range(4):
        dma(a, sFd, d * 1024, vFdma, S_W1, sFs, d * 1024)
    for d in range(4):
        dma(a, sT2, d * 1024, vFdma, S_B1, sFs, d * 1024)
    a(f"s_mov_b32 s{sT2}, {GTB}")
    a(f"s_mov_b32 s{sT3}, 0")
    dma(a, sT2, 0, vFdma, S_GT, sT3)

    def chunk_dmas(c):
        b = c & 3
        out = x_dmas(c)
        out.append(lambda a: dma(a, sPd, b * 4096, vPdma, S_WQ, sPs, c * 65536))
        out.append(lambda a: dma(a, sP2d, b * 4096, vPdma, S_WQ, sP2s, c * 65536))
        return out

    for c in range(4):
        for f in chunk_dmas(c):
            f(a)

    def reads(g):
        c, s = g >> 2, g & 3
        b, p = c & 3, g & 1
        w = WF + p * 20
        grp = [[f"ds_read_b128 v[{XF+4*p}:{XF+4*p+3}], v{vXrd+s} offset:{b*16384}",
                f"ds_read_b64_tr_b16 v[{w}:{w+1}], v{vPrd} offset:{b*4096+s*1024}",
                f"ds_read_b64_tr_b16 v[{w+2}:{w+3}], v{vPrd} offset:{b*4096+s*1024+256}"],
               [f"ds_read_b64_tr_b16 v[{w+4}:{w+5}], v{vP1} offset:{b*4096+s*1024}",
                f"ds_read_b64_tr_b16 v[{w+6}:{w+7}], v{vP1} offset:{b*4096+s*1024+256}"],
               [f"ds_read_b64_tr_b16 v[{w+8}:{w+9}], v{vKV} offset:{g*512}",
                f"ds_read_b64_tr_b16 v[{w+10}:{w+11}], v{vKV} offset:{g*512+128}"],
               [],
               [f"ds_read_b128 v[{w+16}:{w+19}], v{vGT} offset:{g*32}"]]
        return grp

    def mfmas(g):
        p = g & 1
        w = WF + p * 20
        x = XF + 4 * p
        cc = lambda t: "0" if g == 0 else ACC + 16 * t
        return [mfma(ACC, w, x, cc(0)), mfma(ACC + 16, w + 4, x, cc(1)), mfma(ACC + 32, w + 8, x, cc(2)),
                mfma(ACC + 48, x, w + 8, cc(3)), mfma(ACC + 64, w + 16, x, cc(4))]

    kloop(a, 6, chunk_dmas, reads, mfmas, 4)

    a(f"v_lshlrev_b32 v{vT}, 4, v{vL}")
    a(f"s_mov_b32 s{sK0}, {fhex(-LOG2E)}")
    a(f"s_mov_b32 s{sK1}, {fhex(0.25*LOG2E)}")
    a(f"s_lshl_b32 s{sT2}, s{sTB}, 15")
    a(f"s_add_u32 s{sT2}, s{sT2}, {28*1024}")
    q_epilogue(a, ACC, 0)
    a("s_nop 1")
    q_epilogue(a, ACC + 16, 2048)
    K0 = EP + 8
    for r in range(4):
        a(f"v_cvt_pk_bf16_f32 v{K0+r}, v{ACC+32+2*r}, v{ACC+32+2*r+1}")
    a(f"s_lshl_b32 s{sT2}, s{sTB}, 10")
    a(f"s_add_u32 s{sT3}, s{sT2}, {KF}")
    a(f"buffer_store_dwordx4 v[{K0}:{K0+3}], v{vT}, s[{S_WS}:{S_WS+3}], s{sT3} offen")
    V0 = EP + 12
    for r in range(8):
        a(f"v_cvt_pk_bf16_f32 v{V0+r}, v{ACC+48+2*r}, v{ACC+48+2*r+1}")
    a(f"v_and_b32 v{vT+1}, 15, v{vL}")
    a(f"v_lshrrev_b32 v{vT+2}, 5, v{vL}")
    a(f"v_lshl_add_u32 v{vT+1}, v{vT+2}, 4, v{vT+1}")
    a(f"v_lshlrev_b32 v{vT+1}, 4, v{vT+1}")
    a(f"s_add_u32 s{sT3}, s{sT2}, {VF}")
    G0 = EP + 20
    a(f"v_mul_f32 v{G0}, s{sK0}, v{ACC+64}")
    a(f"v_exp_f32 v{G0}, v{G0}")
    a("s_nop 0")
    a(f"v_add_f32 v{G0}, 1.0, v{G0}")
    a(f"v_rcp_f32 v{G0}, v{G0}")
    a(f"v_and_b32 v{G0+1}, 31, v{vL}")
    a(f"v_lshlrev_b32 v{G0+1}, 2, v{G0+1}")
    a(f"s_lshl_b32 s{sT2}, s{sTB}, 7")
    a(f"s_add_u32 s{sT2}, s{sT2}, {GG}")
    a("s_mov_b32 exec_lo, 0xffff0000")
    a("s_mov_b32 exec_hi, 0xffff0000")
    a(f"buffer_store_dwordx4 v[{V0}:{V0+3}], v{vT+1}, s[{S_WS}:{S_WS+3}], s{sT3} offen")
    a(f"buffer_store_dwordx4 v[{V0+4}:{V0+7}], v{vT+1}, s[{S_WS}:{S_WS+3}], s{sT3} offen offset:512")
    a("s_mov_b32 exec_lo, -1")
    a("s_mov_b32 exec_hi, 0")
    a(f"buffer_store_dword v{G0}, v{G0+1}, s[{S_WS}:{S_WS+3}], s{sT2} offen")
    a("s_endpgm")


def k1_shuffle(a):
    a("L_k1_shuffle:")
    srd(a, S_W1, 52, 1792 * 1024)
    srd(a, S_B1, 44, 512 * 1024)
    a(f"v_lshlrev_b32 v{vT}, 4, v{vL}")
    a(f"s_mul_i32 s{sXs}, s{sTT}, {112*1024}")
    a(f"s_mul_i32 s{sT0}, s{sWAVE}, {28*1024}")
    a(f"s_add_u32 s{sXs}, s{sXs}, s{sT0}")
    a(f"s_mul_i32 s{sXd}, s{sWAVE}, {28*1088}")
    for r in range(28):
        dma(a, sXd, r * 1088, vT, S_W1, sXs, r * 1024)
    a(f"s_lshl_b32 s{sPs}, s{sTT}, 15")
    a(f"s_lshl_b32 s{sT0}, s{sWAVE}, 13")
    a(f"s_add_u32 s{sPs}, s{sPs}, s{sT0}")
    a(f"s_mul_i32 s{sPd}, s{sWAVE}, {8*1088}")
    a(f"s_add_u32 s{sPd}, s{sPd}, {112*1088}")
    for r in range(8):
        dma(a, sPd, r * 1088, vT, S_B1, sPs, r * 1024)
    B = 2
    a(f"v_lshrrev_b32 v{B}, 5, v{vL}")
    a(f"v_lshlrev_b32 v{B}, 2, v{B}")
    a(f"v_bfe_u32 v{B+1}, v{vL}, 2, 2")
    a(f"v_add_u32 v{B}, v{B}, v{B+1}")
    a(f"v_mul_u32_u24 v{B}, 1088, v{B}")
    a(f"v_and_b32 v{B+1}, 1, v{vL}")
    a(f"v_lshl_add_u32 v{B}, v{B+1}, 5, v{B}")
    a(f"v_bfe_u32 v{B+1}, v{vL}, 4, 1")
    a(f"v_lshl_add_u32 v{B}, v{B+1}, 4, v{B}")
    a(f"v_bfe_u32 v{B+1}, v{vL}, 1, 1")
    a(f"v_lshl_add_u32 v{B}, v{B+1}, 3, v{B}")
    a(f"s_lshl_b32 s{sT0}, s{sWAVE}, 8")
    a(f"v_add_u32 v{B}, s{sT0}, v{B}")
    a(f"v_add_u32 v{B+1}, {4*17408}, v{B}")
    a(f"v_add_u32 v{B+2}, {8*17408}, v{B}")
    a(f"s_mul_i32 s{sFs}, s{sWAVE}, {4*112*1024}")
    a(f"s_mul_i32 s{sT0}, s{sTT}, {7*1024}")
    a(f"s_add_u32 s{sFs}, s{sFs}, s{sT0}")
    a(f"s_add_u32 s{sFs}, s{sFs}, {W2F}")
    a(f"s_lshl_b32 s{sFd}, s{sWAVE}, 17")
    a(f"s_lshl_b32 s{sT0}, s{sTT}, 11")
    a(f"s_add_u32 s{sFd}, s{sFd}, s{sT0}")
    a(f"s_add_u32 s{sFd}, s{sFd}, {WOF}")
    a("s_waitcnt vmcnt(0)")
    a("s_barrier")
    R = 20
    frs = [(nb, k) for nb in range(4) for k in range(9)]
    for i0 in range(0, 36, 6):
        for i in range(i0, i0 + 6):
            nb, k = frs[i]
            d = R + 4 * i
            off = (k & 3) * 17408 + nb * 64
            a(f"ds_read_b64_tr_b16 v[{d}:{d+1}], v{B+(k>>2)} offset:{off}")
            a(f"ds_read_b64_tr_b16 v[{d+2}:{d+3}], v{B+(k>>2)} offset:{off+8*1088}")
        a("s_waitcnt lgkmcnt(0)")
        for i in range(i0, i0 + 6):
            nb, k = frs[i]
            d = R + 4 * i
            if k < 7:
                a(f"s_add_u32 s{sT1}, s{sFs}, {nb*112*1024 + k*1024}")
            else:
                a(f"s_add_u32 s{sT1}, s{sFd}, {nb*32*1024 + (k-7)*1024}")
            a(f"buffer_store_dwordx4 v[{d}:{d+3}], v{vT}, s[{S_WS}:{S_WS+3}], s{sT1} offen")
    a("s_endpgm")


def k1(a, name):
    a(f".globl {name}\n.p2align 8\n.type {name},@function\n{name}:")
    a("s_cmp_ge_u32 s2, 256")
    a("s_cbranch_scc1 L_k1_end")
    a("s_load_dwordx16 s[36:51], s[0:1], 0")
    a("s_load_dwordx4 s[52:55], s[0:1], 64")
    a("s_load_dwordx2 s[56:57], s[0:1], 96")
    a(f"v_and_b32 v{vL}, 63, v0")
    a("v_lshrrev_b32 v2, 6, v0")
    a("s_and_b32 s3, s2, 7")
    a(f"s_lshr_b32 s{sT0}, s2, 3")
    a(f"v_readfirstlane_b32 s{sWAVE}, v2")
    a(f"s_and_b32 s{sTT}, s{sT0}, 1")
    a("s_lshl_b32 s3, s3, 1")
    a(f"s_add_u32 s{sTT}, s{sTT}, s3")
    a(f"s_lshr_b32 s{sJ}, s{sT0}, 1")
    a(f"s_lshl_b32 s{sTB}, s{sTT}, 2")
    a(f"s_add_u32 s{sTB}, s{sTB}, s{sWAVE}")
    a("s_waitcnt lgkmcnt(0)")
    srd(a, S_X, 36, 2048 * 1024)
    srd(a, S_WQ, 38, 512 * 1024)
    srd(a, S_WS, 56, WS_BYTES)
    a(f"s_cmp_eq_u32 s{sJ}, 14")
    a("s_cbranch_scc1 L_k1_special")
    a(f"s_cmp_eq_u32 s{sJ}, 15")
    a("s_cbranch_scc1 L_k1_shuffle")
    k1_main(a)
    k1_special(a)
    k1_shuffle(a)
    a("L_k1_end:")
    a("s_endpgm")
```

```python
from asmlib import *

S_WS = 4
sWAVE, sTP, sHG, sT0, sT1, sT2 = 8, 9, 10, 11, 16, 17
sMASK = 12
sIT = 14
sA0, sA1, sW0, sW1 = 20, 21, 22, 23
sTHL, sTHH = 24, 25
vL, vKA, vVA, vT = 1, 2, 3, 4
Q0, Q1 = 12, 16
KFR = 20
VFR = 28
PK = 44
SX, SY = 52, 68
O0, O1 = 84, 100
CM = 116
FACC = 12
RING = 76
K2_VGPRS = 208
RED = 131072
K2_LDS = RED + 16384 + 256
FORCE_FALLBACK = False


def unit(a, ab, kbl, first_iter_barrier=False):
    C, N = (SX, SY) if ab == 0 else (SY, SX)
    p = kbl & 1
    e = lambda i: a(f"v_exp_f32 v{C+i}, v{C+i}")
    c = lambda k: a(f"v_cvt_pk_bf16_f32 v{PK+k}, v{C+2*k}, v{C+2*k+1}")
    e(0); e(1)
    a(f"v_cvt_pk_bf16_f32 v{PK+7}, v{N+14}, v{N+15}")
    if ab == 0:
        a(mfma(N, KFR + 4 * p, Q1, "0"))
    else:
        a("s_waitcnt lgkmcnt(0)")
        a(mfma(N, KFR + 4 * (1 - p), Q0, "0"))
    e(2); e(3); c(0); e(4); e(5); c(1)
    if ab == 0:
        a(mfma(O1, VFR + 8 * (1 - p) + 4, PK + 4, O1))
        if first_iter_barrier:
            a(f"s_cmp_lg_u32 s{sIT}, 0")
            a("s_cbranch_scc1 L_k2_nobar")
            a("s_waitcnt vmcnt(0)")
            a("s_barrier")
            a("L_k2_nobar:")
        q = 1 - p
        a(f"ds_read_b128 v[{KFR+4*q}:{KFR+4*q+3}], v{vKA} offset:{(kbl+1)*1024}")
        a(f"s_mov_b64 exec, s[{sMASK}:{sMASK+1}]")
        a(f"ds_read_b128 v[{VFR+8*q}:{VFR+8*q+3}], v{vVA} offset:{(kbl+1)*1024}")
        a(f"ds_read_b128 v[{VFR+8*q+4}:{VFR+8*q+7}], v{vVA} offset:{(kbl+1)*1024+512}")
        a("s_mov_b64 exec, -1")
    else:
        a(mfma(O0, VFR + 8 * p + 4, PK + 4, O0))
    e(6); e(7); c(2); e(8); e(9); c(3); e(10); e(11)
    O = O0 if ab == 0 else O1
    a(mfma(O, VFR + 8 * p, PK, O))
    c(4); e(12); e(13); c(5); e(14); e(15); c(6)


def fallback_block(a, Q, O, tag):
    m, t = vT, vT + 1
    a(f"v_mov_b32 v{m}, 0xff800000")
    a(f"v_lshlrev_b32 v{vKA}, 4, v{vL}")
    a(f"s_mov_b32 s{sIT}, 0")
    a(f"L_k2_fb1_{tag}:")
    a(f"ds_read_b128 v[{KFR}:{KFR+3}], v{vKA}")
    a(f"v_add_u32 v{vKA}, 1024, v{vKA}")
    a("s_waitcnt lgkmcnt(0)")
    a(mfma(SX, KFR, Q, "0"))
    a("s_nop 7\ns_nop 7")
    for r in range(8):
        a(f"v_max3_f32 v{m}, v{SX+2*r}, v{SX+2*r+1}, v{m}")
    a(f"s_add_u32 s{sIT}, s{sIT}, 1")
    a(f"s_cmp_lt_u32 s{sIT}, 64")
    a(f"s_cbranch_scc1 L_k2_fb1_{tag}")
    a(f"v_mov_b32 v{t}, v{m}")
    a("s_nop 1")
    a(f"v_permlane32_swap_b32 v{m}, v{t}")
    a("s_nop 1")
    a(f"v_max_f32 v{m}, v{m}, v{t}")
    for r in range(16):
        a(f"v_sub_f32 v{CM+r}, 0, v{m}")
        a(f"v_mov_b32 v{O+r}, 0")
    a(f"v_lshlrev_b32 v{vKA}, 4, v{vL}")
    a(f"v_and_b32 v{vVA}, 15, v{vL}")
    a(f"v_lshrrev_b32 v{t}, 5, v{vL}")
    a(f"v_lshl_add_u32 v{vVA}, v{t}, 4, v{vVA}")
    a(f"v_lshlrev_b32 v{vVA}, 4, v{vVA}")
    a(f"v_add_u32 v{vVA}, 0x10000, v{vVA}")
    a(f"s_mov_b32 s{sIT}, 0")
    a(f"L_k2_fb2_{tag}:")
    a(f"ds_read_b128 v[{KFR}:{KFR+3}], v{vKA}")
    a(f"s_mov_b64 exec, s[{sMASK}:{sMASK+1}]")
    a(f"ds_read_b128 v[{VFR}:{VFR+3}], v{vVA}")
    a(f"ds_read_b128 v[{VFR+4}:{VFR+7}], v{vVA} offset:512")
    a("s_mov_b64 exec, -1")
    a(f"v_add_u32 v{vKA}, 1024, v{vKA}")
    a(f"v_add_u32 v{vVA}, 1024, v{vVA}")
    a("s_waitcnt lgkmcnt(0)")
    a(mfma(SX, KFR, Q, CM))
    a("s_nop 7\ns_nop 7")
    for r in range(16):
        a(f"v_exp_f32 v{SX+r}, v{SX+r}")
    a("s_nop 0")
    for r in range(8):
        a(f"v_cvt_pk_bf16_f32 v{PK+r}, v{SX+2*r}, v{SX+2*r+1}")
    a("s_nop 1")
    a(mfma(O, VFR, PK, O))
    a(mfma(O, VFR + 4, PK + 4, O))
    a(f"s_add_u32 s{sIT}, s{sIT}, 1")
    a(f"s_cmp_lt_u32 s{sIT}, 64")
    a(f"s_cbranch_scc1 L_k2_fb2_{tag}")
    a("s_nop 7\ns_nop 7")


def attention(a):
    a("L_k2_attn:")
    a("s_setprio 2")
    a(f"s_lshl_b32 s{sT0}, s{sHG}, 2")
    a(f"s_add_u32 s{sT0}, s{sT0}, s{sWAVE}")
    a(f"s_lshl_b32 s{sT0}, s{sT0}, 10")
    a(f"s_lshl_b32 s{sT1}, s{sTP}, 16")
    a(f"s_add_u32 s{sT2}, s{sT0}, s{sT1}")
    a(f"s_add_u32 s{sT1}, s{sT2}, 32768")
    a(f"buffer_load_dwordx4 v[{Q0}:{Q0+3}], v{vT}, s[{S_WS}:{S_WS+3}], s{sT2} offen")
    a(f"buffer_load_dwordx4 v[{Q1}:{Q1+3}], v{vT}, s[{S_WS}:{S_WS+3}], s{sT1} offen")
    kv_dma(a)
    a(f"s_mov_b32 s{sMASK}, 0x0000ffff")
    a(f"s_mov_b32 s{sMASK+1}, 0x0000ffff")
    for r in range(16):
        a(f"v_mov_b32 v{VFR+r}, 0x3f803f80")
    for r in range(8):
        a(f"v_mov_b32 v{PK+r}, 0")
    for r in range(16):
        a(f"v_mov_b32 v{O0+r}, 0")
        a(f"v_mov_b32 v{O1+r}, 0")
    a(f"v_mov_b32 v{SY+14}, 0")
    a(f"v_mov_b32 v{SY+15}, 0")
    a(f"v_lshlrev_b32 v{vKA}, 4, v{vL}")
    a(f"v_and_b32 v{vVA}, 15, v{vL}")
    a(f"v_lshrrev_b32 v{vT+1}, 5, v{vL}")
    a(f"v_lshl_add_u32 v{vVA}, v{vT+1}, 4, v{vVA}")
    a(f"v_lshlrev_b32 v{vVA}, 4, v{vVA}")
    a(f"v_add_u32 v{vVA}, 0x10000, v{vVA}")
    a(f"s_mov_b32 s{sIT}, 0")
    a("s_waitcnt vmcnt(14)")
    a("s_barrier")
    a(f"ds_read_b128 v[{KFR}:{KFR+3}], v{vKA}")
    a(f"s_mov_b64 exec, s[{sMASK}:{sMASK+1}]")
    a(f"ds_read_b128 v[{VFR}:{VFR+3}], v{vVA}")
    a(f"ds_read_b128 v[{VFR+4}:{VFR+7}], v{vVA} offset:512")
    a("s_mov_b64 exec, -1")
    a("s_waitcnt lgkmcnt(0)")
    a(mfma(SX, KFR, Q0, "0"))
    a("s_nop 7\ns_nop 7")
    a("L_k2_loop:")
    for kbl in range(8):
        unit(a, 0, kbl, first_iter_barrier=(kbl == 7))
        if kbl == 7:
            a(f"v_add_u32 v{vKA}, 8192, v{vKA}")
            a(f"v_add_u32 v{vVA}, 8192, v{vVA}")
        unit(a, 1, kbl)
    a(f"s_add_u32 s{sIT}, s{sIT}, 1")
    a(f"s_cmp_lt_u32 s{sIT}, 8")
    a("s_cbranch_scc1 L_k2_loop")
    a(f"v_cvt_pk_bf16_f32 v{PK+7}, v{SY+14}, v{SY+15}")
    a("s_nop 1")
    a(mfma(O1, VFR + 8 + 4, PK + 4, O1))
    a("s_waitcnt lgkmcnt(0)")
    a("s_nop 7\ns_nop 7")
    a(f"s_mov_b32 s{sTHL}, {fhex(2.0**-30)}")
    a(f"s_mov_b32 s{sTHH}, {fhex(2.0**60)}")
    t = vT + 1
    a(f"v_mul_f32 v{t}, 0, v{O0+8}")
    for r in range(8):
        a(f"v_fma_f32 v{t}, v{O0+r}, 0, v{t}")
    a(f"v_fma_f32 v{t}, v{O1+8}, 0, v{t}")
    for r in range(8):
        a(f"v_fma_f32 v{t}, v{O1+r}, 0, v{t}")
    a(f"v_cmp_u_f32 vcc, v{t}, v{t}")
    a(f"v_min_f32 v{t+1}, v{O0+8}, v{O1+8}")
    a(f"v_max_f32 v{t+2}, v{O0+8}, v{O1+8}")
    a(f"v_cmp_gt_f32 s[26:27], s{sTHL}, v{t+1}")
    a(f"v_cmp_lt_f32 s[28:29], s{sTHH}, v{t+2}")
    a("s_nop 3")
    a("s_or_b64 vcc, vcc, s[26:27]")
    a("s_or_b64 vcc, vcc, s[28:29]")
    if FORCE_FALLBACK:
        a("s_mov_b64 vcc, -1")
    a("s_cbranch_vccz L_k2_norm")
    fallback_block(a, Q0, O0, "a")
    fallback_block(a, Q1, O1, "b")
    a("L_k2_norm:")
    a(f"v_lshlrev_b32 v{vT}, 4, v{vL}")
    for (O, so, pk) in ((O0, sT2, PK), (O1, sT1, PK + 4)):
        a(f"v_rcp_f32 v{t}, v{O+8}")
        a("s_nop 0")
        for r in range(8):
            a(f"v_mul_f32 v{O+r}, v{O+r}, v{t}")
        for r in range(4):
            a(f"v_cvt_pk_bf16_f32 v{pk+r}, v{O+2*r}, v{O+2*r+1}")
    a(f"s_add_u32 s{sT2}, s{sT2}, {OF}")
    a(f"s_add_u32 s{sT1}, s{sT1}, {OF}")
    a(f"buffer_store_dwordx4 v[{PK}:{PK+3}], v{vT}, s[{S_WS}:{S_WS+3}], s{sT2} offen")
    a(f"buffer_store_dwordx4 v[{PK+4}:{PK+7}], v{vT}, s[{S_WS}:{S_WS+3}], s{sT1} offen")
    a("s_endpgm")


def kv_dma(a):
    a(f"s_lshl_b32 s{sA0}, s{sWAVE}, 10")
    a(f"s_add_u32 s{sA1}, s{sA0}, {KF}")
    for m in range(8):
        for half in range(2):
            off = m * 8192 + half * 65536
            a(f"s_add_u32 m0, s{sA0}, {off}" if off else f"s_mov_b32 m0, s{sA0}")
            a(f"s_add_u32 s{sW0}, s{sA1}, {off}")
            a(f"buffer_load_dwordx4 v{vT}, s[{S_WS}:{S_WS+3}], s{sW0} offen lds")


def ffn2(a):
    a("L_k2_ffn:")
    kv_dma(a)
    for r in range(4):
        a(f"v_mov_b32 v{FACC+r}, 0")
    a(f"s_sub_u32 s{sT0}, s{sWAVE}, 4")
    a(f"s_lshl_b32 s{sT1}, s{sT0}, 12")
    a(f"s_add_u32 s{sT1}, s{sT1}, {RED}")
    a(f"v_add_u32 v{vT+1}, s{sT1}, v{vT}")
    for r in range(4):
        a(f"ds_write_b128 v{vT+1}, v[{FACC}:{FACC+3}] offset:{r*1024}")
    a(f"v_mov_b32 v{vT+2}, {RED+16384}")
    a(f"ds_write_b32 v{vT+2}, v{FACC}")
    a(f"s_mul_i32 s{sT1}, s{sT0}, {28*1024}")
    a(f"s_mul_i32 s{sA0}, s{sTP}, {2*112*1024}")
    a(f"s_add_u32 s{sA0}, s{sA0}, s{sT1}")
    a(f"s_add_u32 s{sA0}, s{sA0}, {AF}")
    a(f"s_add_u32 s{sA1}, s{sA0}, {112*1024}")
    a(f"s_mul_i32 s{sW0}, s{sHG}, {2*112*1024}")
    a(f"s_add_u32 s{sW0}, s{sW0}, s{sT1}")
    a(f"s_add_u32 s{sW0}, s{sW0}, {W2F}")
    a(f"s_add_u32 s{sW1}, s{sW0}, {112*1024}")
    a("s_waitcnt vmcnt(14) lgkmcnt(0)")
    a("s_barrier")
    a("s_waitcnt vmcnt(0)")
    a("s_barrier")

    def loads(ks):
        b = RING + (ks & 7) * 16
        if ks and (ks & 3) == 0:
            for s in (sA0, sA1, sW0, sW1):
                a(f"s_add_u32 s{s}, s{s}, 4096")
        o = (ks & 3) * 1024
        for i, s in enumerate((sW0, sW1, sA0, sA1)):
            a(f"buffer_load_dwordx4 v[{b+4*i}:{b+4*i+3}], v{vT}, s[{S_WS}:{S_WS+3}], s{s} offen offset:{o}")

    for ks in range(8):
        loads(ks)
    for ks in range(28):
        b = RING + (ks & 7) * 16
        left = min(27 - ks, 7) * 4
        a(f"s_waitcnt vmcnt({left})")
        for ni in range(2):
            for ti in range(2):
                acc = FACC + 16 * (2 * ni + ti)
                a(mfma(acc, b + 4 * ni, b + 8 + 4 * ti, "0" if ks == 0 else acc))
        if ks + 8 < 28:
            loads(ks + 8)
    a("s_nop 7\ns_nop 7")
    a(f"v_lshlrev_b32 v{vT+1}, 2, v{vL}")
    a(f"v_add_u32 v{vT+1}, {RED}, v{vT+1}")
    for r in range(64):
        a(f"ds_add_f32 v{vT+1}, v{FACC+r} offset:{r*256}")
    a("s_waitcnt lgkmcnt(0)")
    a(f"v_mov_b32 v{vT+2}, {RED+16384}")
    a(f"v_mov_b32 v{vT+3}, 1")
    a("s_mov_b64 exec, 1")
    a(f"ds_add_rtn_u32 v{vT+3}, v{vT+2}, v{vT+3}")
    a("s_waitcnt lgkmcnt(0)")
    a(f"v_readfirstlane_b32 s{sT0}, v{vT+3}")
    a("s_mov_b64 exec, -1")
    a(f"s_cmp_lg_u32 s{sT0}, 3")
    a("s_cbranch_scc1 L_k2_end")
    for r in range(64):
        a(f"ds_read_b32 v{FACC+r}, v{vT+1} offset:{r*256}")
    a(f"s_lshl_b32 s{sT0}, s{sTP}, 16")
    a(f"s_lshl_b32 s{sT1}, s{sHG}, 12")
    a(f"s_add_u32 s{sT0}, s{sT0}, s{sT1}")
    a(f"s_add_u32 s{sT0}, s{sT0}, {BF}")
    a(f"s_add_u32 s{sT1}, s{sT0}, 32768")
    a("s_waitcnt lgkmcnt(0)")
    for ni in range(2):
        for ti in range(2):
            acc = FACC + 16 * (2 * ni + ti)
            pk = RING + 8 * (2 * ni + ti)
            for r in range(8):
                a(f"v_cvt_pk_bf16_f32 v{pk+r}, v{acc+2*r}, v{acc+2*r+1}")
            so = sT0 if ti == 0 else sT1
            a(f"buffer_store_dwordx4 v[{pk}:{pk+3}], v{vT}, s[{S_WS}:{S_WS+3}], s{so} offen offset:{ni*2048}")
            a(f"buffer_store_dwordx4 v[{pk+4}:{pk+7}], v{vT}, s[{S_WS}:{S_WS+3}], s{so} offen offset:{ni*2048+1024}")
    a("s_endpgm")


def tile_map(a):
    a("s_and_b32 s3, s2, 7")
    a(f"s_lshr_b32 s{sT0}, s2, 3")
    a(f"s_and_b32 s{sHG}, s{sT0}, 7")
    a(f"s_lshr_b32 s{sT0}, s{sT0}, 3")
    a("s_lshl_b32 s3, s3, 2")
    a(f"s_add_u32 s{sTP}, s3, s{sT0}")


def k2(a, name):
    a(f".globl {name}\n.p2align 8\n.type {name},@function\n{name}:")
    a("s_cmp_ge_u32 s2, 256")
    a("s_cbranch_scc1 L_k2_end")
    a("s_load_dwordx2 s[18:19], s[0:1], 96")
    a(f"v_and_b32 v{vL}, 63, v0")
    a("v_lshrrev_b32 v2, 6, v0")
    tile_map(a)
    a(f"v_readfirstlane_b32 s{sWAVE}, v2")
    a(f"v_lshlrev_b32 v{vT}, 4, v{vL}")
    a("s_waitcnt lgkmcnt(0)")
    srd(a, S_WS, 18, WS_BYTES)
    a(f"s_cmp_ge_u32 s{sWAVE}, 4")
    a("s_cbranch_scc1 L_k2_ffn")
    attention(a)
    ffn2(a)
    a("L_k2_end:")
    a("s_endpgm")


def k3(a, name):
    S_OUT = 12
    FR = 20
    ACC = 148
    BB = 212
    vG = 220
    a(f".globl {name}\n.p2align 8\n.type {name},@function\n{name}:")
    a("s_cmp_ge_u32 s2, 256")
    a("s_cbranch_scc1 L_k3_end")
    a("s_load_dwordx2 s[18:19], s[0:1], 96")
    a("s_load_dwordx2 s[26:27], s[0:1], 80")
    a(f"v_and_b32 v{vL}, 63, v0")
    a("v_lshrrev_b32 v2, 6, v0")
    tile_map(a)
    a(f"v_readfirstlane_b32 s{sWAVE}, v2")
    a(f"v_lshlrev_b32 v{vT}, 4, v{vL}")
    a("s_waitcnt lgkmcnt(0)")
    srd(a, S_WS, 18, WS_BYTES)
    srd(a, S_OUT, 26, 2048 * 1024)
    a(f"s_lshl_b32 s{sT0}, s{sWAVE}, 13")
    a(f"s_lshl_b32 s{sA0}, s{sTP}, 16")
    a(f"s_add_u32 s{sA0}, s{sA0}, s{sT0}")
    a(f"s_add_u32 s{sA0}, s{sA0}, {OF}")
    a(f"s_add_u32 s{sA1}, s{sA0}, 32768")
    a(f"s_lshl_b32 s{sW0}, s{sHG}, 16")
    a(f"s_add_u32 s{sW0}, s{sW0}, s{sT0}")
    a(f"s_add_u32 s{sW0}, s{sW0}, {WOF}")
    a(f"s_add_u32 s{sW1}, s{sW0}, 32768")
    for k in range(8):
        b = FR + 16 * k
        if k == 4:
            for s in (sA0, sA1, sW0, sW1):
                a(f"s_add_u32 s{s}, s{s}, 4096")
        o = (k & 3) * 1024
        for i, s in enumerate((sW0, sW1, sA0, sA1)):
            a(f"buffer_load_dwordx4 v[{b+4*i}:{b+4*i+3}], v{vT}, s[{S_WS}:{S_WS+3}], s{s} offen offset:{o}")
    sTB, sNB = 28, 29
    a(f"s_and_b32 s{sT0}, s{sWAVE}, 1")
    a(f"s_lshl_b32 s{sTB}, s{sTP}, 1")
    a(f"s_add_u32 s{sTB}, s{sTB}, s{sT0}")
    a(f"s_lshr_b32 s{sT0}, s{sWAVE}, 1")
    a(f"s_lshl_b32 s{sNB}, s{sHG}, 1")
    a(f"s_add_u32 s{sNB}, s{sNB}, s{sT0}")
    a(f"s_lshl_b32 s{sT0}, s{sTB}, 15")
    a(f"s_lshl_b32 s{sT1}, s{sNB}, 11")
    a(f"s_add_u32 s{sT0}, s{sT0}, s{sT1}")
    a(f"s_add_u32 s{sT0}, s{sT0}, {BF}")
    a(f"buffer_load_dwordx4 v[{BB}:{BB+3}], v{vT}, s[{S_WS}:{S_WS+3}], s{sT0} offen")
    a(f"buffer_load_dwordx4 v[{BB+4}:{BB+7}], v{vT}, s[{S_WS}:{S_WS+3}], s{sT0} offen offset:1024")
    a(f"v_and_b32 v{vT+1}, 31, v{vL}")
    a(f"v_lshlrev_b32 v{vT+2}, 2, v{vT+1}")
    a(f"s_lshl_b32 s{sT1}, s{sTB}, 7")
    a(f"s_add_u32 s{sT1}, s{sT1}, {GG}")
    a(f"buffer_load_dword v{vG}, v{vT+2}, s[{S_WS}:{S_WS+3}], s{sT1} offen")
    a(f"v_lshlrev_b32 v{vT+1}, 10, v{vT+1}")
    a(f"v_lshrrev_b32 v{vT+2}, 5, v{vL}")
    a(f"v_lshl_add_u32 v{vT+1}, v{vT+2}, 5, v{vT+1}")
    a(f"s_lshl_b32 s{sT2}, s{sTB}, 15")
    a(f"s_lshl_b32 s{sT0}, s{sNB}, 6")
    a(f"s_add_u32 s{sT2}, s{sT2}, s{sT0}")
    for k in range(8):
        b = FR + 16 * k
        a(f"s_waitcnt vmcnt({(7-k)*4+3})")
        for ni in range(2):
            for ti in range(2):
                acc = ACC + 16 * (2 * ni + ti)
                a(mfma(acc, b + 4 * ni, b + 8 + 4 * ti, "0" if k == 0 else acc))
    a("s_nop 7\ns_nop 7")
    a(f"s_lshl_b32 s{sT0}, s{sWAVE}, 14")
    a(f"v_add_u32 v{vT+2}, s{sT0}, v{vT}")
    for q in range(4):
        for r4 in range(4):
            s = ACC + 16 * q + 4 * r4
            a(f"ds_write_b128 v{vT+2}, v[{s}:{s+3}] offset:{q*4096+r4*1024}")
    a(f"s_lshl_b32 s{sT0}, s{sWAVE}, 12")
    a(f"v_add_u32 v{vT+2}, s{sT0}, v{vT}")
    a("s_waitcnt lgkmcnt(0)")
    a("s_barrier")
    for w in range(4):
        for r4 in range(4):
            d = FR + 16 * w + 4 * r4
            a(f"ds_read_b128 v[{d}:{d+3}], v{vT+2} offset:{w*16384+r4*1024}")
    a("s_waitcnt vmcnt(0)")
    a(f"v_sub_f32 v{vG+1}, 1.0, v{vG}")
    for r in range(8):
        a(f"v_lshlrev_b32 v{ACC+2*r}, 16, v{BB+r}")
        a(f"v_and_b32 v{ACC+2*r+1}, 0xffff0000, v{BB+r}")
    a("s_waitcnt lgkmcnt(0)")
    for r in range(16):
        a(f"v_add_f32 v{FR+r}, v{FR+r}, v{FR+16+r}")
        a(f"v_add_f32 v{FR+32+r}, v{FR+32+r}, v{FR+48+r}")
    for r in range(16):
        a(f"v_add_f32 v{FR+r}, v{FR+r}, v{FR+32+r}")
    for r in range(16):
        a(f"v_mul_f32 v{FR+r}, v{vG}, v{FR+r}")
    for r in range(16):
        a(f"v_fma_f32 v{FR+r}, v{vG+1}, v{ACC+r}, v{FR+r}")
    for r in range(8):
        a(f"v_cvt_pk_bf16_f32 v{FR+16+r}, v{FR+2*r}, v{FR+2*r+1}")
    a(f"buffer_store_dwordx4 v[{FR+16}:{FR+19}], v{vT+1}, s[{S_OUT}:{S_OUT+3}], s{sT2} offen")
    a(f"buffer_store_dwordx4 v[{FR+20}:{FR+23}], v{vT+1}, s[{S_OUT}:{S_OUT+3}], s{sT2} offen offset:16")
    a("L_k3_end:")
    a("s_endpgm")
K3_VGPRS = 224
K3_LDS = 65536
```

```python
import sys, os
sys.path.insert(0, os.path.dirname(os.path.abspath(__file__)))
from asmlib import *
import k1 as K1
import k2 as K2

NAME = "gated_mix__grouped_kv_mqa__dense_activation_mish__prompt"
REF = f"cdna_kernels/{NAME}.s.ref"

def build():
    hdr = []
    for line in open(REF).read().split("\n"):
        if line.startswith("; Override launch") or line.startswith("; grid=ceil") or line.startswith("; @launch"):
            continue
        if not line.startswith(";"):
            break
        hdr.append(line)
    hdr.append(f"; @launch kernel=gm_k1_kernel grid=(256,1,1) block=(256,1,1) lds={K1.K1_LDS}")
    hdr.append(f"; @launch kernel=gm_k2_kernel grid=(256,1,1) block=(512,1,1) lds={K2.K2_LDS}")
    hdr.append(f"; @launch kernel=gm_k3_kernel grid=(256,1,1) block=(256,1,1) lds={K2.K3_LDS}")
    a = A()
    a('.amdgcn_target "amdgcn-amd-amdhsa--gfx950"')
    a(".text")
    K1.k1(a, "gm_k1_kernel")
    K2.k2(a, "gm_k2_kernel")
    K2.k3(a, "gm_k3_kernel")
    a('.section .rodata,"a"')
    t = a.text()
    for n, v in (("gm_k1_kernel", K1.K1_VGPRS), ("gm_k2_kernel", K2.K2_VGPRS), ("gm_k3_kernel", K2.K3_VGPRS)):
        t += ".p2align 6\n" + desc(n, v)
    return "\n".join(hdr) + "\n" + t

if __name__ == "__main__":
    out = sys.argv[1] if len(sys.argv) > 1 else f"cdna_kernels/{NAME}.s"
    if len(sys.argv) > 2 and sys.argv[2] == "fb":
        K2.FORCE_FALLBACK = True
    open(out, "w").write(build())
    print("wrote", out)
```

```python
class A:
    def __init__(self):
        self.l = []
    def __call__(self, s):
        for line in s.strip("\n").split("\n"):
            line = line.rstrip()
            if not line.strip():
                continue
            if line.strip().endswith(":") or line.strip().startswith("."):
                self.l.append(line.strip())
            else:
                self.l.append("    " + line.strip())
    def c(self, s):
        self.l.append("    ; " + s)
    def text(self):
        return "\n".join(self.l) + "\n"

def vr(b, n=1):
    return f"v{b}" if n == 1 else f"v[{b}:{b+n-1}]"
def sr(b, n=1):
    return f"s{b}" if n == 1 else f"s[{b}:{b+n-1}]"

MFMA = "v_mfma_f32_32x32x16_bf16"

def mfma(d, a, b, c):
    cs = c if isinstance(c, str) else vr(c, 16)
    return f"{MFMA} {vr(d,16)}, {vr(a,4)}, {vr(b,4)}, {cs}"

def srd(a, dst, lo, nbytes):
    a(f"s_mov_b32 s{dst}, s{lo}")
    a(f"s_mov_b32 s{dst+1}, s{lo+1}")
    a(f"s_mov_b32 s{dst+2}, {hex(nbytes)}")
    a(f"s_mov_b32 s{dst+3}, 0x00020000")

def desc(name, vgprs, sgprs=96):
    acc = (vgprs + 3) // 4 * 4
    return f""".amdhsa_kernel {name}
  .amdhsa_next_free_vgpr {acc}
  .amdhsa_next_free_sgpr {sgprs}
  .amdhsa_accum_offset {acc}
  .amdhsa_group_segment_fixed_size 0
  .amdhsa_kernarg_size 104
  .amdhsa_user_sgpr_count 2
  .amdhsa_user_sgpr_kernarg_segment_ptr 1
  .amdhsa_system_sgpr_workgroup_id_x 1
.end_amdhsa_kernel
"""

QF = 0x000000
OF = 0x200000
BF = 0x400000
AF = 0x600000
W2F = 0xD00000
WOF = 0xEC0000
KF = 0xF40000
VF = 0xF50000
GG = 0xF60000
WS_BYTES = 0x1000000
LOG2E = 1.4426950408889634

import struct
def f2u(x):
    return struct.unpack("<I", struct.pack("<f", x))[0]
def fhex(x):
    return hex(f2u(x))

class P:
    ON = False
PROFBASE = 0xF80000
def mark(a, i, real=False):
    if P.ON:
        a(f"{'s_memrealtime' if real else 's_memtime'} s[{70+2*i}:{71+2*i}]")
def prof_end(a, kidx, swave, ws, vt=1, nm=13):
    if not P.ON:
        return
    mark(a, 12, real=True)
    a("s_waitcnt lgkmcnt(0)")
    a(f"s_lshl_b32 s68, s2, {4 if kidx == 1 else 3}")
    a(f"s_add_u32 s68, s68, s{swave}")
    a("s_lshl_b32 s68, s68, 6")
    a(f"s_add_u32 s68, s68, {PROFBASE + [0, 0x20000, 0x60000][kidx]}")
    a("s_mov_b64 exec, 1")
    a(f"v_mov_b32 v{vt}, 0")
    for i in range(nm):
        a(f"v_mov_b32 v{vt+1}, s{70+2*i}")
        a(f"buffer_store_dword v{vt+1}, v{vt}, s[{ws}:{ws+3}], s68 offen offset:{4*i}")
        a("s_nop 1")
```

```python
from asmlib import *

S_X, S_WQ, S_W1, S_WS, S_B1, S_GT = 4, 8, 12, 16, 20, 24
sWAVE, sTT, sJ, sTB = 28, 29, 30, 31
sXs, sPs, sFs, sT0 = 32, 33, 34, 35
sXd, sPd, sFd, sT1, sT2, sT3, sK0, sK1 = 58, 59, 60, 61, 62, 63, 64, 65
sP2s, sP2d = 66, 67
vL = 1
vXdma = 2
vPdma = 6
vFdma = 7
vXrd = 8
vPrd = 12
vFrd = 13
vT = 17
ACC = 20
XF = 100
WF = 108
EP = 148
K1_VGPRS = 200
K1_LDS = 144 * 1088

XBASE, FBASE, PBASE = 0, 65536, 131072
P0B, P1B, WKB, WVB, GTB = 65536, 81920, 98304, 98304 + 16384 + 128, 132096


def dma(a, m0base, m0imm, voff, srd_, soff, soffimm=None, tmp=sT1):
    if m0imm:
        a(f"s_add_u32 m0, s{m0base}, {m0imm}")
    else:
        a(f"s_mov_b32 m0, s{m0base}")
    if soffimm:
        a(f"s_add_u32 s{tmp}, s{soff}, {soffimm}")
        so = tmp
    else:
        a("s_nop 0")
        so = soff
    a(f"buffer_load_dwordx4 v{voff}, s[{srd_}:{srd_+3}], s{so} offen lds")


def common_addr(a):
    a(f"v_lshrrev_b32 v{vT}, 3, v{vL}")
    a(f"v_lshrrev_b32 v{vT+1}, 4, v{vL}")
    a(f"v_and_b32 v{vT+2}, 7, v{vL}")
    for q in range(4):
        d = vXdma + q
        a(f"v_add_u32 v{d}, {(4*q)&7}, v{vT+1}")
        a(f"v_xor_b32 v{d}, v{d}, v{vT+2}")
        a(f"v_lshlrev_b32 v{d}, 4, v{d}")
        a(f"v_add_u32 v{EP}, {8*q}, v{vT}")
        a(f"v_lshlrev_b32 v{EP}, 10, v{EP}")
        a(f"v_add_u32 v{d}, v{d}, v{EP}")
    a(f"v_and_b32 v{vT}, 31, v{vL}")
    a(f"v_lshrrev_b32 v{vT+1}, 5, v{vL}")
    a(f"v_lshrrev_b32 v{vT+2}, 1, v{vT}")
    a(f"v_and_b32 v{vT+2}, 7, v{vT+2}")
    a(f"v_xor_b32 v{vT+2}, v{vT+2}, v{vT+1}")
    a(f"v_lshlrev_b32 v{vT}, 7, v{vT}")
    a(f"s_lshl_b32 s{sT0}, s{sWAVE}, 12")
    a(f"v_add_u32 v{vT}, s{sT0}, v{vT}")
    for s in range(4):
        d = vXrd + s
        a(f"v_xor_b32 v{d}, {2*s}, v{vT+2}")
        a(f"v_lshlrev_b32 v{d}, 4, v{d}")
        a(f"v_add_u32 v{d}, v{d}, v{vT}")
    a(f"v_lshrrev_b32 v{vT}, 2, v{vL}")
    a(f"v_lshlrev_b32 v{vT}, 10, v{vT}")
    a(f"v_and_b32 v{vT+1}, 3, v{vL}")
    a(f"v_lshlrev_b32 v{vT+1}, 4, v{vT+1}")
    a(f"v_add_u32 v{vPdma}, v{vT}, v{vT+1}")
    a(f"v_lshrrev_b32 v{vT}, 5, v{vL}")
    a(f"v_lshlrev_b32 v{vT}, 3, v{vT}")
    a(f"v_bfe_u32 v{vT+1}, v{vL}, 2, 2")
    a(f"v_add_u32 v{vT}, v{vT}, v{vT+1}")
    a(f"v_bfe_u32 v{vT+2}, v{vL}, 4, 1")
    a(f"v_and_b32 v{EP}, 3, v{vL}")
    a(f"v_lshlrev_b32 v{EP}, 3, v{EP}")
    a(f"v_lshl_add_u32 v{EP}, v{vT+2}, 5, v{EP}")
    a(f"v_lshl_add_u32 v{vPrd}, v{vT}, 6, v{EP}")
    a(f"s_lshl_b32 s{sXs}, s{sTB}, 15")
    a(f"s_lshl_b32 s{sXd}, s{sWAVE}, 12")


def x_dmas(c):
    b = c & 3
    out = []
    for q in range(4):
        out.append(lambda a, q=q: dma(a, sXd, XBASE + b * 16384 + q * 1024, vXdma + q, S_X, sXs, c * 128))
    return out


def kloop(a, nchunk_dma, chunk_dmas, reads, mfmas, pre_issued):
    n = nchunk_dma
    mark(a, 2)
    a(f"s_waitcnt vmcnt({3*n})")
    a("s_barrier")
    mark(a, 3)
    rd = reads(0)
    for grp in rd:
        for r in grp:
            a(r)
    cnt = [len(x) for x in rd]
    pending = []
    for g in range(32):
        c, s = g >> 2, g & 3
        if g in (8, 16, 24):
            mark(a, 3 + g // 8)
        nxt = reads(g + 1) if g < 31 else [[] for _ in range(5)]
        mf = mfmas(g)
        for t in range(5):
            later = sum(cnt[t + 1:]) + sum(len(x) for x in nxt[:t])
            a(f"s_waitcnt lgkmcnt({later})")
            a(mf[t])
            if t == 0 and s == 3 and c < 7:
                left = {0: 2 * n, 6: 0}.get(c, n)
                a(f"s_waitcnt vmcnt({left})")
                a("s_barrier")
                if 1 <= c <= 4:
                    pending = chunk_dmas(c + 3)
            for r in nxt[t]:
                a(r)
            if pending and not (t == 0 and s == 3):
                pending.pop(0)(a)
        assert not (s == 2 and pending), "dma left"
    a("s_nop 7")
    a("s_nop 7")
    mark(a, 7)


def q_epilogue(a, acc, head0_imm):
    for r in range(16):
        a(f"v_mul_f32 v{acc+r}, s{sK1}, v{acc+r}")
    for r in range(8):
        a(f"v_cvt_pk_bf16_f32 v{EP+r}, v{acc+2*r}, v{acc+2*r+1}")
    a(f"buffer_store_dwordx4 v[{EP}:{EP+3}], v{vT}, s[{S_WS}:{S_WS+3}], s{sT2} offen offset:{head0_imm}")
    a(f"buffer_store_dwordx4 v[{EP+4}:{EP+7}], v{vT}, s[{S_WS}:{S_WS+3}], s{sT2} offen offset:{head0_imm+1024}")


def k1_main(a):
    a("L_k1_main:")
    srd(a, S_W1, 48, 512 * 3584)
    srd(a, S_B1, 50, 3584)
    common_addr(a)
    a(f"v_add_u32 v{vPrd}, {PBASE}, v{vPrd}")
    a(f"v_lshl_add_u32 v{EP+1}, v{vT}, 8, v{EP}")
    a(f"v_add_u32 v{EP+1}, {FBASE}, v{EP+1}")
    for t in range(4):
        a(f"v_xor_b32 v{vFrd+t}, {t}, v{vT+1}")
        a(f"v_lshl_add_u32 v{vFrd+t}, v{vFrd+t}, 6, v{EP+1}")
    a(f"v_lshrrev_b32 v{vT}, 4, v{vL}")
    a(f"v_and_b32 v{vT+1}, 15, v{vL}")
    a(f"v_lshlrev_b32 v{vT+2}, 2, v{vT}")
    a(f"v_xor_b32 v{vT+1}, v{vT+1}, v{vT+2}")
    a(f"v_lshlrev_b32 v{vT+1}, 4, v{vT+1}")
    a(f"v_mul_u32_u24 v{vT}, 3584, v{vT}")
    a(f"v_add_u32 v{vFdma}, v{vT}, v{vT+1}")
    a(f"s_lshl_b32 s{sPs}, s{sWAVE}, 14")
    a(f"s_lshl_b32 s{sT0}, s{sJ}, 6")
    a(f"s_add_u32 s{sPs}, s{sPs}, s{sT0}")
    a(f"s_lshl_b32 s{sPd}, s{sWAVE}, 10")
    a(f"s_add_u32 s{sPd}, s{sPd}, {PBASE}")
    a(f"s_mul_i32 s{sFs}, s{sWAVE}, {16*3584}")
    a(f"s_lshl_b32 s{sT0}, s{sJ}, 8")
    a(f"s_add_u32 s{sFs}, s{sFs}, s{sT0}")
    a(f"s_lshl_b32 s{sFd}, s{sWAVE}, 12")
    a(f"s_add_u32 s{sFd}, s{sFd}, {FBASE}")

    def chunk_dmas(c):
        b = c & 3
        out = x_dmas(c)
        out.append(lambda a: dma(a, sPd, b * 4096, vPdma, S_WQ, sPs, c * 65536))
        for d in range(4):
            out.append(lambda a, d=d: dma(a, sFd, b * 16384 + d * 1024, vFdma, S_W1, sFs, (c * 64 + d * 4) * 3584))
        return out

    a(f"v_lshrrev_b32 v{vT}, 5, v{vL}")
    a(f"v_lshlrev_b32 v{vT}, 3, v{vT}")
    for u in range(4):
        for q in range(4):
            d = WF + (u * 4 + q) * 2
            a(f"buffer_load_dwordx2 v[{d}:{d+1}], v{vT}, s[{S_B1}:{S_B1+3}], s{sT0} offen offset:{64*u+16*q}")
    for c in range(4):
        for f in chunk_dmas(c):
            f(a)
    a("s_waitcnt vmcnt(36)")
    for u in range(4):
        for q in range(4):
            d = WF + (u * 4 + q) * 2
            o = ACC + 16 * (1 + u) + 4 * q
            a(f"v_lshlrev_b32 v{o}, 16, v{d}")
            a(f"v_and_b32 v{o+1}, 0xffff0000, v{d}")
            a(f"v_lshlrev_b32 v{o+2}, 16, v{d+1}")
            a(f"v_and_b32 v{o+3}, 0xffff0000, v{d+1}")

    def reads(g):
        c, s = g >> 2, g & 3
        b, p = c & 3, g & 1
        w = WF + p * 20
        grp = [[f"ds_read_b128 v[{XF+4*p}:{XF+4*p+3}], v{vXrd+s} offset:{b*16384}",
                f"ds_read_b64_tr_b16 v[{w}:{w+1}], v{vPrd} offset:{b*4096+s*1024}",
                f"ds_read_b64_tr_b16 v[{w+2}:{w+3}], v{vPrd} offset:{b*4096+s*1024+256}"]]
        for t in range(4):
            ww = w + 4 * (1 + t)
            grp.append([f"ds_read_b64_tr_b16 v[{ww}:{ww+1}], v{vFrd+t} offset:{b*16384+s*4096}",
                        f"ds_read_b64_tr_b16 v[{ww+2}:{ww+3}], v{vFrd+t} offset:{b*16384+s*4096+1024}"])
        return grp

    def mfmas(g):
        p = g & 1
        out = []
        for t in range(5):
            cc = "0" if (g == 0 and t == 0) else ACC + 16 * t
            out.append(mfma(ACC + 16 * t, WF + p * 20 + 4 * t, XF + 4 * p, cc))
        return out

    kloop(a, 9, chunk_dmas, reads, mfmas, 4)

    a(f"v_lshlrev_b32 v{vT}, 4, v{vL}")
    a(f"s_mov_b32 s{sK0}, {fhex(LOG2E)}")
    a(f"s_mov_b32 s{sK1}, {fhex(0.25*LOG2E)}")
    a(f"s_lshl_b32 s{sT2}, s{sTB}, 15")
    a(f"s_lshl_b32 s{sT0}, s{sJ}, 11")
    a(f"s_add_u32 s{sT2}, s{sT2}, s{sT0}")
    q_epilogue(a, ACC, 0)
    a(f"s_mul_i32 s{sT3}, s{sTB}, {112*1024}")
    a(f"s_lshl_b32 s{sT0}, s{sJ}, 13")
    a(f"s_add_u32 s{sT3}, s{sT3}, s{sT0}")
    a(f"s_add_u32 s{sT3}, s{sT3}, {AF}")
    T1, T2 = EP + 8, EP + 16
    for u in range(4):
        acc = ACC + 16 * (1 + u)
        pk = EP + 24 + (u & 1) * 8
        for half in range(2):
            x0 = acc + 8 * half
            for i in range(8):
                a(f"v_mul_f32 v{T1+i}, s{sK0}, v{x0+i}")
            for i in range(8):
                a(f"v_exp_f32 v{T1+i}, v{T1+i}")
            for i in range(8):
                a(f"v_add_f32 v{T2+i}, 2.0, v{T1+i}")
            for i in range(8):
                a(f"v_fma_f32 v{T2+i}, v{T1+i}, v{T2+i}, 2.0")
            for i in range(8):
                a(f"v_rcp_f32 v{T2+i}, v{T2+i}")
            for i in range(8):
                a(f"v_mul_f32 v{T2+i}, v{x0+i}, v{T2+i}")
            for i in range(8):
                a(f"v_fma_f32 v{x0+i}, v{T2+i}, -2.0, v{x0+i}")
            for i in range(4):
                a(f"v_cvt_pk_bf16_f32 v{pk+4*half+i}, v{x0+2*i}, v{x0+2*i+1}")
        if u == 2:
            a(f"s_add_u32 s{sT3}, s{sT3}, 4096")
        o = (u & 1) * 2048
        a(f"buffer_store_dwordx4 v[{pk}:{pk+3}], v{vT}, s[{S_WS}:{S_WS+3}], s{sT3} offen offset:{o}")
        a(f"buffer_store_dwordx4 v[{pk+4}:{pk+7}], v{vT}, s[{S_WS}:{S_WS+3}], s{sT3} offen offset:{o+1024}")
    mark(a, 8)
    if P.ON:
        a("s_waitcnt vmcnt(0)")
    mark(a, 9)
    prof_end(a, 0, sWAVE, S_WS)
    a("s_endpgm")


def k1_special(a):
    a("L_k1_special:")
    srd(a, S_W1, 40, 16384)
    srd(a, S_B1, 42, 16384)
    srd(a, S_GT, 54, 1024)
    common_addr(a)
    vKV, vGT, vP1 = vFrd, vFrd + 1, vFrd + 2
    a(f"v_and_b32 v{EP+1}, 3, v{vL}")
    a(f"v_lshlrev_b32 v{EP+1}, 3, v{EP+1}")
    a(f"v_lshl_add_u32 v{EP+1}, v{vT}, 5, v{EP+1}")
    a(f"v_mul_u32_u24 v{EP+2}, {WVB-WKB}, v{vT+2}")
    a(f"v_add_u32 v{EP+1}, v{EP+1}, v{EP+2}")
    a(f"v_add_u32 v{vKV}, {WKB}, v{EP+1}")
    a(f"v_lshrrev_b32 v{EP+1}, 5, v{vL}")
    a(f"v_lshlrev_b32 v{EP+1}, 4, v{EP+1}")
    a(f"v_add_u32 v{vGT}, {GTB}, v{EP+1}")
    a(f"v_add_u32 v{vP1}, {P1B}, v{vPrd}")
    a(f"v_add_u32 v{vPrd}, {P0B}, v{vPrd}")
    a(f"s_lshl_b32 s{sPs}, s{sWAVE}, 14")
    a(f"s_add_u32 s{sP2s}, s{sPs}, 960")
    a(f"s_add_u32 s{sPs}, s{sPs}, 896")
    a(f"s_lshl_b32 s{sPd}, s{sWAVE}, 10")
    a(f"s_add_u32 s{sP2d}, s{sPd}, {P1B}")
    a(f"s_add_u32 s{sPd}, s{sPd}, {P0B}")
    a(f"v_lshlrev_b32 v{vFdma}, 4, v{vL}")
    a(f"s_lshl_b32 s{sFs}, s{sWAVE}, 12")
    a(f"s_add_u32 s{sFd}, s{sFs}, {WKB}")
    a(f"s_add_u32 s{sT2}, s{sFs}, {WVB}")
    for d in range(4):
        dma(a, sFd, d * 1024, vFdma, S_W1, sFs, d * 1024)
    for d in range(4):
        dma(a, sT2, d * 1024, vFdma, S_B1, sFs, d * 1024)
    a(f"s_mov_b32 s{sT2}, {GTB}")
    a(f"s_mov_b32 s{sT3}, 0")
    dma(a, sT2, 0, vFdma, S_GT, sT3)

    def chunk_dmas(c):
        b = c & 3
        out = x_dmas(c)
        out.append(lambda a: dma(a, sPd, b * 4096, vPdma, S_WQ, sPs, c * 65536))
        out.append(lambda a: dma(a, sP2d, b * 4096, vPdma, S_WQ, sP2s, c * 65536))
        return out

    for c in range(4):
        for f in chunk_dmas(c):
            f(a)

    def reads(g):
        c, s = g >> 2, g & 3
        b, p = c & 3, g & 1
        w = WF + p * 20
        grp = [[f"ds_read_b128 v[{XF+4*p}:{XF+4*p+3}], v{vXrd+s} offset:{b*16384}",
                f"ds_read_b64_tr_b16 v[{w}:{w+1}], v{vPrd} offset:{b*4096+s*1024}",
                f"ds_read_b64_tr_b16 v[{w+2}:{w+3}], v{vPrd} offset:{b*4096+s*1024+256}"],
               [f"ds_read_b64_tr_b16 v[{w+4}:{w+5}], v{vP1} offset:{b*4096+s*1024}",
                f"ds_read_b64_tr_b16 v[{w+6}:{w+7}], v{vP1} offset:{b*4096+s*1024+256}"],
               [f"ds_read_b64_tr_b16 v[{w+8}:{w+9}], v{vKV} offset:{g*512}",
                f"ds_read_b64_tr_b16 v[{w+10}:{w+11}], v{vKV} offset:{g*512+128}"],
               [],
               [f"ds_read_b128 v[{w+16}:{w+19}], v{vGT} offset:{g*32}"]]
        return grp

    def mfmas(g):
        p = g & 1
        w = WF + p * 20
        x = XF + 4 * p
        cc = lambda t: "0" if g == 0 else ACC + 16 * t
        return [mfma(ACC, w, x, cc(0)), mfma(ACC + 16, w + 4, x, cc(1)), mfma(ACC + 32, w + 8, x, cc(2)),
                mfma(ACC + 48, x, w + 8, cc(3)), mfma(ACC + 64, w + 16, x, cc(4))]

    kloop(a, 6, chunk_dmas, reads, mfmas, 4)

    a(f"v_lshlrev_b32 v{vT}, 4, v{vL}")
    a(f"s_mov_b32 s{sK0}, {fhex(-LOG2E)}")
    a(f"s_mov_b32 s{sK1}, {fhex(0.25*LOG2E)}")
    a(f"s_lshl_b32 s{sT2}, s{sTB}, 15")
    a(f"s_add_u32 s{sT2}, s{sT2}, {28*1024}")
    q_epilogue(a, ACC, 0)
    a("s_nop 1")
    q_epilogue(a, ACC + 16, 2048)
    K0 = EP + 8
    for r in range(4):
        a(f"v_cvt_pk_bf16_f32 v{K0+r}, v{ACC+32+2*r}, v{ACC+32+2*r+1}")
    a(f"s_lshl_b32 s{sT2}, s{sTB}, 10")
    a(f"s_add_u32 s{sT3}, s{sT2}, {KF}")
    a(f"buffer_store_dwordx4 v[{K0}:{K0+3}], v{vT}, s[{S_WS}:{S_WS+3}], s{sT3} offen")
    V0 = EP + 12
    for r in range(8):
        a(f"v_cvt_pk_bf16_f32 v{V0+r}, v{ACC+48+2*r}, v{ACC+48+2*r+1}")
    a(f"v_and_b32 v{vT+1}, 15, v{vL}")
    a(f"v_lshrrev_b32 v{vT+2}, 5, v{vL}")
    a(f"v_lshl_add_u32 v{vT+1}, v{vT+2}, 4, v{vT+1}")
    a(f"v_lshlrev_b32 v{vT+1}, 4, v{vT+1}")
    a(f"s_add_u32 s{sT3}, s{sT2}, {VF}")
    G0 = EP + 20
    a(f"v_mul_f32 v{G0}, s{sK0}, v{ACC+64}")
    a(f"v_exp_f32 v{G0}, v{G0}")
    a("s_nop 0")
    a(f"v_add_f32 v{G0}, 1.0, v{G0}")
    a(f"v_rcp_f32 v{G0}, v{G0}")
    a(f"v_and_b32 v{G0+1}, 31, v{vL}")
    a(f"v_lshlrev_b32 v{G0+1}, 2, v{G0+1}")
    a(f"s_lshl_b32 s{sT2}, s{sTB}, 7")
    a(f"s_add_u32 s{sT2}, s{sT2}, {GG}")
    a("s_mov_b32 exec_lo, 0xffff0000")
    a("s_mov_b32 exec_hi, 0xffff0000")
    a(f"buffer_store_dwordx4 v[{V0}:{V0+3}], v{vT+1}, s[{S_WS}:{S_WS+3}], s{sT3} offen")
    a(f"buffer_store_dwordx4 v[{V0+4}:{V0+7}], v{vT+1}, s[{S_WS}:{S_WS+3}], s{sT3} offen offset:512")
    a("s_mov_b32 exec_lo, -1")
    a("s_mov_b32 exec_hi, 0")
    a(f"buffer_store_dword v{G0}, v{G0+1}, s[{S_WS}:{S_WS+3}], s{sT2} offen")
    mark(a, 8)
    if P.ON:
        a("s_waitcnt vmcnt(0)")
    mark(a, 9)
    prof_end(a, 0, sWAVE, S_WS)
    a("s_endpgm")


def k1_shuffle(a):
    a("L_k1_shuffle:")
    srd(a, S_W1, 52, 1792 * 1024)
    srd(a, S_B1, 44, 512 * 1024)
    a(f"v_lshlrev_b32 v{vT}, 4, v{vL}")
    a(f"s_mul_i32 s{sXs}, s{sTT}, {112*1024}")
    a(f"s_mul_i32 s{sT0}, s{sWAVE}, {28*1024}")
    a(f"s_add_u32 s{sXs}, s{sXs}, s{sT0}")
    a(f"s_mul_i32 s{sXd}, s{sWAVE}, {28*1088}")
    for r in range(28):
        dma(a, sXd, r * 1088, vT, S_W1, sXs, r * 1024)
    a(f"s_lshl_b32 s{sPs}, s{sTT}, 15")
    a(f"s_lshl_b32 s{sT0}, s{sWAVE}, 13")
    a(f"s_add_u32 s{sPs}, s{sPs}, s{sT0}")
    a(f"s_mul_i32 s{sPd}, s{sWAVE}, {8*1088}")
    a(f"s_add_u32 s{sPd}, s{sPd}, {112*1088}")
    for r in range(8):
        dma(a, sPd, r * 1088, vT, S_B1, sPs, r * 1024)
    B = 2
    a(f"v_lshrrev_b32 v{B}, 5, v{vL}")
    a(f"v_lshlrev_b32 v{B}, 2, v{B}")
    a(f"v_bfe_u32 v{B+1}, v{vL}, 2, 2")
    a(f"v_add_u32 v{B}, v{B}, v{B+1}")
    a(f"v_mul_u32_u24 v{B}, 1088, v{B}")
    a(f"v_and_b32 v{B+1}, 1, v{vL}")
    a(f"v_lshl_add_u32 v{B}, v{B+1}, 5, v{B}")
    a(f"v_bfe_u32 v{B+1}, v{vL}, 4, 1")
    a(f"v_lshl_add_u32 v{B}, v{B+1}, 4, v{B}")
    a(f"v_bfe_u32 v{B+1}, v{vL}, 1, 1")
    a(f"v_lshl_add_u32 v{B}, v{B+1}, 3, v{B}")
    a(f"s_lshl_b32 s{sT0}, s{sWAVE}, 8")
    a(f"v_add_u32 v{B}, s{sT0}, v{B}")
    a(f"v_add_u32 v{B+1}, {4*17408}, v{B}")
    a(f"v_add_u32 v{B+2}, {8*17408}, v{B}")
    a(f"s_mul_i32 s{sFs}, s{sWAVE}, {4*112*1024}")
    a(f"s_mul_i32 s{sT0}, s{sTT}, {7*1024}")
    a(f"s_add_u32 s{sFs}, s{sFs}, s{sT0}")
    a(f"s_add_u32 s{sFs}, s{sFs}, {W2F}")
    a(f"s_lshl_b32 s{sFd}, s{sWAVE}, 17")
    a(f"s_lshl_b32 s{sT0}, s{sTT}, 11")
    a(f"s_add_u32 s{sFd}, s{sFd}, s{sT0}")
    a(f"s_add_u32 s{sFd}, s{sFd}, {WOF}")
    mark(a, 2)
    a("s_waitcnt vmcnt(0)")
    a("s_barrier")
    mark(a, 3)
    R = 20
    frs = [(nb, k) for nb in range(4) for k in range(9)]
    for i0 in range(0, 36, 6):
        for i in range(i0, i0 + 6):
            nb, k = frs[i]
            d = R + 4 * i
            off = (k & 3) * 17408 + nb * 64
            a(f"ds_read_b64_tr_b16 v[{d}:{d+1}], v{B+(k>>2)} offset:{off}")
            a(f"ds_read_b64_tr_b16 v[{d+2}:{d+3}], v{B+(k>>2)} offset:{off+8*1088}")
        a("s_waitcnt lgkmcnt(0)")
        for i in range(i0, i0 + 6):
            nb, k = frs[i]
            d = R + 4 * i
            if k < 7:
                a(f"s_add_u32 s{sT1}, s{sFs}, {nb*112*1024 + k*1024}")
            else:
                a(f"s_add_u32 s{sT1}, s{sFd}, {nb*32*1024 + (k-7)*1024}")
            a(f"buffer_store_dwordx4 v[{d}:{d+3}], v{vT}, s[{S_WS}:{S_WS+3}], s{sT1} offen")
    mark(a, 8)
    if P.ON:
        a("s_waitcnt vmcnt(0)")
    mark(a, 9)
    prof_end(a, 0, sWAVE, S_WS)
    a("s_endpgm")


def k1(a, name):
    a(f".globl {name}\n.p2align 8\n.type {name},@function\n{name}:")
    a("s_cmp_ge_u32 s2, 256")
    a("s_cbranch_scc1 L_k1_end")
    mark(a, 0, real=True)
    mark(a, 1)
    a("s_load_dwordx16 s[36:51], s[0:1], 0")
    a("s_load_dwordx4 s[52:55], s[0:1], 64")
    a("s_load_dwordx2 s[56:57], s[0:1], 96")
    a(f"v_and_b32 v{vL}, 63, v0")
    a("v_lshrrev_b32 v2, 6, v0")
    a("s_and_b32 s3, s2, 7")
    a(f"s_lshr_b32 s{sT0}, s2, 3")
    a(f"v_readfirstlane_b32 s{sWAVE}, v2")
    a(f"s_and_b32 s{sTT}, s{sT0}, 1")
    a("s_lshl_b32 s3, s3, 1")
    a(f"s_add_u32 s{sTT}, s{sTT}, s3")
    a(f"s_lshr_b32 s{sJ}, s{sT0}, 1")
    a(f"s_lshl_b32 s{sTB}, s{sTT}, 2")
    a(f"s_add_u32 s{sTB}, s{sTB}, s{sWAVE}")
    a("s_waitcnt lgkmcnt(0)")
    srd(a, S_X, 36, 2048 * 1024)
    srd(a, S_WQ, 38, 512 * 1024)
    srd(a, S_WS, 56, WS_BYTES)
    a(f"s_cmp_eq_u32 s{sJ}, 14")
    a("s_cbranch_scc1 L_k1_special")
    a(f"s_cmp_eq_u32 s{sJ}, 15")
    a("s_cbranch_scc1 L_k1_shuffle")
    k1_main(a)
    k1_special(a)
    k1_shuffle(a)
    a("L_k1_end:")
    a("s_endpgm")
```

```python
from asmlib import *

S_WS = 4
sWAVE, sTP, sHG, sT0, sT1, sT2 = 8, 9, 10, 11, 16, 17
sMASK = 12
sIT = 14
sA0, sA1, sW0, sW1 = 20, 21, 22, 23
sTHL, sTHH = 24, 25
vL, vKA, vVA, vT = 1, 2, 3, 4
Q0, Q1 = 12, 16
KFR = 20
VFR = 28
PK = 44
SX, SY = 52, 68
O0, O1 = 84, 100
CM = 116
FACC = 12
RING = 76
K2_VGPRS = 208
RED = 131072
K2_LDS = RED + 32768
FORCE_FALLBACK = False
BAR2_KBL = 4
RED_IT = 5


def unit(a, ab, kbl, first_iter_barrier=False):
    C, N = (SX, SY) if ab == 0 else (SY, SX)
    p = kbl & 1
    e = lambda i: a(f"v_exp_f32 v{C+i}, v{C+i}")
    c = lambda k: a(f"v_cvt_pk_bf16_f32 v{PK+k}, v{C+2*k}, v{C+2*k+1}")
    e(0); e(1)
    a(f"v_cvt_pk_bf16_f32 v{PK+7}, v{N+14}, v{N+15}")
    if ab == 0:
        a(mfma(N, KFR + 4 * p, Q1, "0"))
    else:
        a("s_waitcnt lgkmcnt(0)")
        a(mfma(N, KFR + 4 * (1 - p), Q0, "0"))
    e(2); e(3); c(0); e(4); e(5); c(1)
    if ab == 0:
        a(mfma(O1, VFR + 8 * (1 - p) + 4, PK + 4, O1))
        if first_iter_barrier:
            a(f"s_cmp_lg_u32 s{sIT}, 0")
            a("s_cbranch_scc1 L_k2_nobar")
            a("s_waitcnt vmcnt(0)")
            a("s_barrier")
            a("L_k2_nobar:")
        q = 1 - p
        a(f"ds_read_b128 v[{KFR+4*q}:{KFR+4*q+3}], v{vKA} offset:{(kbl+1)*1024}")
        a(f"s_mov_b64 exec, s[{sMASK}:{sMASK+1}]")
        a(f"ds_read_b128 v[{VFR+8*q}:{VFR+8*q+3}], v{vVA} offset:{(kbl+1)*1024}")
        a(f"ds_read_b128 v[{VFR+8*q+4}:{VFR+8*q+7}], v{vVA} offset:{(kbl+1)*1024+512}")
        a("s_mov_b64 exec, -1")
    else:
        a(mfma(O0, VFR + 8 * p + 4, PK + 4, O0))
    e(6); e(7); c(2); e(8); e(9); c(3); e(10); e(11)
    O = O0 if ab == 0 else O1
    a(mfma(O, VFR + 8 * p, PK, O))
    c(4); e(12); e(13); c(5); e(14); e(15); c(6)


def fallback_block(a, Q, O, tag):
    m, t = vT, vT + 1
    a(f"v_mov_b32 v{m}, 0xff800000")
    a(f"v_lshlrev_b32 v{vKA}, 4, v{vL}")
    a(f"s_mov_b32 s{sIT}, 0")
    a(f"L_k2_fb1_{tag}:")
    a(f"ds_read_b128 v[{KFR}:{KFR+3}], v{vKA}")
    a(f"v_add_u32 v{vKA}, 1024, v{vKA}")
    a("s_waitcnt lgkmcnt(0)")
    a(mfma(SX, KFR, Q, "0"))
    a("s_nop 7\ns_nop 7")
    for r in range(8):
        a(f"v_max3_f32 v{m}, v{SX+2*r}, v{SX+2*r+1}, v{m}")
    a(f"s_add_u32 s{sIT}, s{sIT}, 1")
    a(f"s_cmp_lt_u32 s{sIT}, 64")
    a(f"s_cbranch_scc1 L_k2_fb1_{tag}")
    a(f"v_mov_b32 v{t}, v{m}")
    a("s_nop 1")
    a(f"v_permlane32_swap_b32 v{m}, v{t}")
    a("s_nop 1")
    a(f"v_max_f32 v{m}, v{m}, v{t}")
    for r in range(16):
        a(f"v_sub_f32 v{CM+r}, 0, v{m}")
        a(f"v_mov_b32 v{O+r}, 0")
    a(f"v_lshlrev_b32 v{vKA}, 4, v{vL}")
    a(f"v_and_b32 v{vVA}, 15, v{vL}")
    a(f"v_lshrrev_b32 v{t}, 5, v{vL}")
    a(f"v_lshl_add_u32 v{vVA}, v{t}, 4, v{vVA}")
    a(f"v_lshlrev_b32 v{vVA}, 4, v{vVA}")
    a(f"v_add_u32 v{vVA}, 0x10000, v{vVA}")
    a(f"s_mov_b32 s{sIT}, 0")
    a(f"L_k2_fb2_{tag}:")
    a(f"ds_read_b128 v[{KFR}:{KFR+3}], v{vKA}")
    a(f"s_mov_b64 exec, s[{sMASK}:{sMASK+1}]")
    a(f"ds_read_b128 v[{VFR}:{VFR+3}], v{vVA}")
    a(f"ds_read_b128 v[{VFR+4}:{VFR+7}], v{vVA} offset:512")
    a("s_mov_b64 exec, -1")
    a(f"v_add_u32 v{vKA}, 1024, v{vKA}")
    a(f"v_add_u32 v{vVA}, 1024, v{vVA}")
    a("s_waitcnt lgkmcnt(0)")
    a(mfma(SX, KFR, Q, CM))
    a("s_nop 7\ns_nop 7")
    for r in range(16):
        a(f"v_exp_f32 v{SX+r}, v{SX+r}")
    a("s_nop 0")
    for r in range(8):
        a(f"v_cvt_pk_bf16_f32 v{PK+r}, v{SX+2*r}, v{SX+2*r+1}")
    a("s_nop 1")
    a(mfma(O, VFR, PK, O))
    a(mfma(O, VFR + 4, PK + 4, O))
    a(f"s_add_u32 s{sIT}, s{sIT}, 1")
    a(f"s_cmp_lt_u32 s{sIT}, 64")
    a(f"s_cbranch_scc1 L_k2_fb2_{tag}")
    a("s_nop 7\ns_nop 7")


def attention(a):
    a("L_k2_attn:")
    a("s_setprio 2")
    a(f"s_lshl_b32 s{sT0}, s{sHG}, 2")
    a(f"s_add_u32 s{sT0}, s{sT0}, s{sWAVE}")
    a(f"s_lshl_b32 s{sT0}, s{sT0}, 10")
    a(f"s_lshl_b32 s{sT1}, s{sTP}, 16")
    a(f"s_add_u32 s{sT2}, s{sT0}, s{sT1}")
    a(f"s_add_u32 s{sT1}, s{sT2}, 32768")
    a(f"buffer_load_dwordx4 v[{Q0}:{Q0+3}], v{vT}, s[{S_WS}:{S_WS+3}], s{sT2} offen")
    a(f"buffer_load_dwordx4 v[{Q1}:{Q1+3}], v{vT}, s[{S_WS}:{S_WS+3}], s{sT1} offen")
    kv_dma(a)
    a(f"s_mov_b32 s{sMASK}, 0x0000ffff")
    a(f"s_mov_b32 s{sMASK+1}, 0x0000ffff")
    for r in range(16):
        a(f"v_mov_b32 v{VFR+r}, 0x3f803f80")
    for r in range(8):
        a(f"v_mov_b32 v{PK+r}, 0")
    for r in range(16):
        a(f"v_mov_b32 v{O0+r}, 0")
        a(f"v_mov_b32 v{O1+r}, 0")
    a(f"v_mov_b32 v{SY+14}, 0")
    a(f"v_mov_b32 v{SY+15}, 0")
    a(f"v_lshlrev_b32 v{vKA}, 4, v{vL}")
    a(f"v_and_b32 v{vVA}, 15, v{vL}")
    a(f"v_lshrrev_b32 v{vT+1}, 5, v{vL}")
    a(f"v_lshl_add_u32 v{vVA}, v{vT+1}, 4, v{vVA}")
    a(f"v_lshlrev_b32 v{vVA}, 4, v{vVA}")
    a(f"v_add_u32 v{vVA}, 0x10000, v{vVA}")
    a(f"s_mov_b32 s{sIT}, 0")
    mark(a, 2)
    a("s_waitcnt vmcnt(14)")
    a("s_barrier")
    mark(a, 3)
    a(f"ds_read_b128 v[{KFR}:{KFR+3}], v{vKA}")
    a(f"s_mov_b64 exec, s[{sMASK}:{sMASK+1}]")
    a(f"ds_read_b128 v[{VFR}:{VFR+3}], v{vVA}")
    a(f"ds_read_b128 v[{VFR+4}:{VFR+7}], v{vVA} offset:512")
    a("s_mov_b64 exec, -1")
    a("s_waitcnt lgkmcnt(0)")
    a(mfma(SX, KFR, Q0, "0"))
    a("s_nop 7\ns_nop 7")
    a("L_k2_loop:")
    for kbl in range(8):
        unit(a, 0, kbl, first_iter_barrier=(kbl == BAR2_KBL))
        if kbl == 7:
            a(f"v_add_u32 v{vKA}, 8192, v{vKA}")
            a(f"v_add_u32 v{vVA}, 8192, v{vVA}")
        unit(a, 1, kbl)
    if P.ON:
        a(f"s_cmp_eq_u32 s{sIT}, 0")
        a("s_cbranch_scc0 L_k2_nomark")
        mark(a, 4)
        a("L_k2_nomark:")
    a(f"s_sub_u32 s{sA0}, s{sIT}, {RED_IT}")
    a(f"s_cmp_lt_u32 s{sA0}, 2")
    a("s_cbranch_scc0 L_k2_nobar2")
    a("s_barrier")
    a("L_k2_nobar2:")
    a(f"s_add_u32 s{sIT}, s{sIT}, 1")
    a(f"s_cmp_lt_u32 s{sIT}, 8")
    a("s_cbranch_scc1 L_k2_loop")
    mark(a, 5)
    a(f"v_cvt_pk_bf16_f32 v{PK+7}, v{SY+14}, v{SY+15}")
    a("s_nop 1")
    a(mfma(O1, VFR + 8 + 4, PK + 4, O1))
    a("s_waitcnt lgkmcnt(0)")
    a("s_nop 7\ns_nop 7")
    a(f"s_mov_b32 s{sTHL}, {fhex(2.0**-30)}")
    a(f"s_mov_b32 s{sTHH}, {fhex(2.0**60)}")
    t = vT + 1
    a(f"v_mul_f32 v{t}, 0, v{O0+8}")
    for r in range(8):
        a(f"v_fma_f32 v{t}, v{O0+r}, 0, v{t}")
    a(f"v_fma_f32 v{t}, v{O1+8}, 0, v{t}")
    for r in range(8):
        a(f"v_fma_f32 v{t}, v{O1+r}, 0, v{t}")
    a(f"v_cmp_u_f32 vcc, v{t}, v{t}")
    a(f"v_min_f32 v{t+1}, v{O0+8}, v{O1+8}")
    a(f"v_max_f32 v{t+2}, v{O0+8}, v{O1+8}")
    a(f"v_cmp_gt_f32 s[26:27], s{sTHL}, v{t+1}")
    a(f"v_cmp_lt_f32 s[28:29], s{sTHH}, v{t+2}")
    a("s_nop 3")
    a("s_or_b64 vcc, vcc, s[26:27]")
    a("s_or_b64 vcc, vcc, s[28:29]")
    if FORCE_FALLBACK:
        a("s_mov_b64 vcc, -1")
    a("s_cbranch_vccz L_k2_norm")
    fallback_block(a, Q0, O0, "a")
    fallback_block(a, Q1, O1, "b")
    a("L_k2_norm:")
    a(f"v_lshlrev_b32 v{vT}, 4, v{vL}")
    for (O, so, pk) in ((O0, sT2, PK), (O1, sT1, PK + 4)):
        a(f"v_rcp_f32 v{t}, v{O+8}")
        a("s_nop 0")
        for r in range(8):
            a(f"v_mul_f32 v{O+r}, v{O+r}, v{t}")
        for r in range(4):
            a(f"v_cvt_pk_bf16_f32 v{pk+r}, v{O+2*r}, v{O+2*r+1}")
    a(f"s_add_u32 s{sT2}, s{sT2}, {OF}")
    a(f"s_add_u32 s{sT1}, s{sT1}, {OF}")
    a(f"buffer_store_dwordx4 v[{PK}:{PK+3}], v{vT}, s[{S_WS}:{S_WS+3}], s{sT2} offen")
    a(f"buffer_store_dwordx4 v[{PK+4}:{PK+7}], v{vT}, s[{S_WS}:{S_WS+3}], s{sT1} offen")
    mark(a, 8)
    if P.ON:
        a("s_waitcnt vmcnt(0)")
    mark(a, 9)
    prof_end(a, 1, sWAVE, S_WS)
    a("s_endpgm")


def kv_dma(a):
    a(f"s_lshl_b32 s{sA0}, s{sWAVE}, 10")
    a(f"s_add_u32 s{sA1}, s{sA0}, {KF}")
    for m in range(8):
        for half in range(2):
            off = m * 8192 + half * 65536
            a(f"s_add_u32 m0, s{sA0}, {off}" if off else f"s_mov_b32 m0, s{sA0}")
            a(f"s_add_u32 s{sW0}, s{sA1}, {off}")
            a(f"buffer_load_dwordx4 v{vT}, s[{S_WS}:{S_WS+3}], s{sW0} offen lds")


def ffn2(a):
    a("L_k2_ffn:")
    kv_dma(a)
    a(f"s_sub_u32 s{sT0}, s{sWAVE}, 4")
    a(f"s_mul_i32 s{sT1}, s{sT0}, {28*1024}")
    a(f"s_mul_i32 s{sA0}, s{sTP}, {2*112*1024}")
    a(f"s_add_u32 s{sA0}, s{sA0}, s{sT1}")
    a(f"s_add_u32 s{sA0}, s{sA0}, {AF}")
    a(f"s_add_u32 s{sA1}, s{sA0}, {112*1024}")
    a(f"s_mul_i32 s{sW0}, s{sHG}, {2*112*1024}")
    a(f"s_add_u32 s{sW0}, s{sW0}, s{sT1}")
    a(f"s_add_u32 s{sW0}, s{sW0}, {W2F}")
    a(f"s_add_u32 s{sW1}, s{sW0}, {112*1024}")

    def loads(ks):
        b = RING + (ks & 7) * 16
        if ks and (ks & 3) == 0:
            for s in (sA0, sA1, sW0, sW1):
                a(f"s_add_u32 s{s}, s{s}, 4096")
        o = (ks & 3) * 1024
        for i, s in enumerate((sW0, sW1, sA0, sA1)):
            a(f"buffer_load_dwordx4 v[{b+4*i}:{b+4*i+3}], v{vT}, s[{S_WS}:{S_WS+3}], s{s} offen offset:{o}")

    for ks in range(8):
        loads(ks)
    mark(a, 2)
    a("s_waitcnt vmcnt(46)")
    a("s_barrier")
    mark(a, 3)
    for ks in range(28):
        b = RING + (ks & 7) * 16
        left = min(27 - ks, 7) * 4
        a(f"s_waitcnt vmcnt({left})")
        if ks == 0:
            a("s_barrier")
            mark(a, 4)
        for ni in range(2):
            for ti in range(2):
                acc = FACC + 16 * (2 * ni + ti)
                a(mfma(acc, b + 4 * ni, b + 8 + 4 * ti, "0" if ks == 0 else acc))
        if ks + 8 < 28:
            loads(ks + 8)
    a("s_nop 7\ns_nop 7")
    mark(a, 5)
    a(f"v_add_u32 v{vT+1}, {RED}, v{vT}")
    a(f"s_sub_u32 s{sT0}, s{sWAVE}, 4")
    for v in range(4):
        if v < 3:
            a(f"s_cmp_lg_u32 s{sT0}, {v}")
            a(f"s_cbranch_scc1 L_k2_red{v+1}")
        ti, ni = v & 1, v >> 1
        for j in range(2):
            src = FACC + 16 * (2 * j + (1 - ti))
            for r4 in range(4):
                a(f"ds_write_b128 v{vT+1}, v[{src+4*r4}:{src+4*r4+3}] offset:{v*8192+j*4096+r4*1024}")
        a("s_waitcnt lgkmcnt(0)")
        a("s_barrier")
        for j in range(2):
            for r4 in range(4):
                d = RING + 16 * j + 4 * r4
                a(f"ds_read_b128 v[{d}:{d+3}], v{vT+1} offset:{(v^1)*8192+j*4096+r4*1024}")
        jo = 1 - ni
        a(f"s_waitcnt lgkmcnt({0})")
        qs = FACC + 16 * (2 * jo + ti)
        qk = FACC + 16 * (2 * ni + ti)
        for r in range(16):
            a(f"v_add_f32 v{qs+r}, v{qs+r}, v{RING+16*jo+r}")
        for r4 in range(4):
            a(f"ds_write_b128 v{vT+1}, v[{qs+4*r4}:{qs+4*r4+3}] offset:{(v^1)*8192+r4*1024}")
        for r in range(16):
            a(f"v_add_f32 v{qk+r}, v{qk+r}, v{RING+16*ni+r}")
        a("s_waitcnt lgkmcnt(0)")
        a("s_barrier")
        for r4 in range(4):
            d = RING + 4 * r4
            a(f"ds_read_b128 v[{d}:{d+3}], v{vT+1} offset:{(v^3)*8192+r4*1024}")
        a(f"s_lshl_b32 s{sT0}, s{sTP}, 16")
        a(f"s_lshl_b32 s{sT1}, s{sHG}, 12")
        a(f"s_add_u32 s{sT0}, s{sT0}, s{sT1}")
        a(f"s_add_u32 s{sT0}, s{sT0}, {BF + ti*32768 + ni*2048}")
        a("s_waitcnt lgkmcnt(0)")
        for r in range(16):
            a(f"v_add_f32 v{qk+r}, v{qk+r}, v{RING+r}")
        for r in range(8):
            a(f"v_cvt_pk_bf16_f32 v{RING+16+r}, v{qk+2*r}, v{qk+2*r+1}")
        a(f"buffer_store_dwordx4 v[{RING+16}:{RING+19}], v{vT}, s[{S_WS}:{S_WS+3}], s{sT0} offen")
        a(f"buffer_store_dwordx4 v[{RING+20}:{RING+23}], v{vT}, s[{S_WS}:{S_WS+3}], s{sT0} offen offset:1024")
        if v < 3:
            a("s_branch L_k2_fend")
            a(f"L_k2_red{v+1}:")
    a("L_k2_fend:")
    mark(a, 8)
    if P.ON:
        a("s_waitcnt vmcnt(0)")
    mark(a, 9)
    prof_end(a, 1, sWAVE, S_WS)
    a("s_endpgm")


def tile_map(a):
    a("s_and_b32 s3, s2, 7")
    a(f"s_lshr_b32 s{sT0}, s2, 3")
    a(f"s_and_b32 s{sHG}, s{sT0}, 7")
    a(f"s_lshr_b32 s{sT0}, s{sT0}, 3")
    a("s_lshl_b32 s3, s3, 2")
    a(f"s_add_u32 s{sTP}, s3, s{sT0}")


def k2(a, name):
    a(f".globl {name}\n.p2align 8\n.type {name},@function\n{name}:")
    a("s_cmp_ge_u32 s2, 256")
    a("s_cbranch_scc1 L_k2_end")
    mark(a, 0, real=True)
    mark(a, 1)
    a("s_load_dwordx2 s[18:19], s[0:1], 96")
    a(f"v_and_b32 v{vL}, 63, v0")
    a("v_lshrrev_b32 v2, 6, v0")
    tile_map(a)
    a(f"v_readfirstlane_b32 s{sWAVE}, v2")
    a(f"v_lshlrev_b32 v{vT}, 4, v{vL}")
    a("s_waitcnt lgkmcnt(0)")
    srd(a, S_WS, 18, WS_BYTES)
    a(f"s_cmp_ge_u32 s{sWAVE}, 4")
    a("s_cbranch_scc1 L_k2_ffn")
    attention(a)
    ffn2(a)
    a("L_k2_end:")
    a("s_endpgm")


def k3(a, name):
    S_OUT = 12
    FR = 20
    ACC = 148
    BB = 212
    vG = 220
    a(f".globl {name}\n.p2align 8\n.type {name},@function\n{name}:")
    a("s_cmp_ge_u32 s2, 256")
    a("s_cbranch_scc1 L_k3_end")
    mark(a, 0, real=True)
    mark(a, 1)
    a("s_load_dwordx2 s[18:19], s[0:1], 96")
    a("s_load_dwordx2 s[26:27], s[0:1], 80")
    a(f"v_and_b32 v{vL}, 63, v0")
    a("v_lshrrev_b32 v2, 6, v0")
    tile_map(a)
    a(f"v_readfirstlane_b32 s{sWAVE}, v2")
    a(f"v_lshlrev_b32 v{vT}, 4, v{vL}")
    a("s_waitcnt lgkmcnt(0)")
    srd(a, S_WS, 18, WS_BYTES)
    srd(a, S_OUT, 26, 2048 * 1024)
    a(f"s_lshl_b32 s{sT0}, s{sWAVE}, 13")
    a(f"s_lshl_b32 s{sA0}, s{sTP}, 16")
    a(f"s_add_u32 s{sA0}, s{sA0}, s{sT0}")
    a(f"s_add_u32 s{sA0}, s{sA0}, {OF}")
    a(f"s_add_u32 s{sA1}, s{sA0}, 32768")
    a(f"s_lshl_b32 s{sW0}, s{sHG}, 16")
    a(f"s_add_u32 s{sW0}, s{sW0}, s{sT0}")
    a(f"s_add_u32 s{sW0}, s{sW0}, {WOF}")
    a(f"s_add_u32 s{sW1}, s{sW0}, 32768")
    for k in range(8):
        b = FR + 16 * k
        if k == 4:
            for s in (sA0, sA1, sW0, sW1):
                a(f"s_add_u32 s{s}, s{s}, 4096")
        o = (k & 3) * 1024
        for i, s in enumerate((sW0, sW1, sA0, sA1)):
            a(f"buffer_load_dwordx4 v[{b+4*i}:{b+4*i+3}], v{vT}, s[{S_WS}:{S_WS+3}], s{s} offen offset:{o}")
    sTB, sNB = 28, 29
    a(f"s_and_b32 s{sT0}, s{sWAVE}, 1")
    a(f"s_lshl_b32 s{sTB}, s{sTP}, 1")
    a(f"s_add_u32 s{sTB}, s{sTB}, s{sT0}")
    a(f"s_lshr_b32 s{sT0}, s{sWAVE}, 1")
    a(f"s_lshl_b32 s{sNB}, s{sHG}, 1")
    a(f"s_add_u32 s{sNB}, s{sNB}, s{sT0}")
    a(f"s_lshl_b32 s{sT0}, s{sTB}, 15")
    a(f"s_lshl_b32 s{sT1}, s{sNB}, 11")
    a(f"s_add_u32 s{sT0}, s{sT0}, s{sT1}")
    a(f"s_add_u32 s{sT0}, s{sT0}, {BF}")
    a(f"buffer_load_dwordx4 v[{BB}:{BB+3}], v{vT}, s[{S_WS}:{S_WS+3}], s{sT0} offen")
    a(f"buffer_load_dwordx4 v[{BB+4}:{BB+7}], v{vT}, s[{S_WS}:{S_WS+3}], s{sT0} offen offset:1024")
    a(f"v_and_b32 v{vT+1}, 31, v{vL}")
    a(f"v_lshlrev_b32 v{vT+2}, 2, v{vT+1}")
    a(f"s_lshl_b32 s{sT1}, s{sTB}, 7")
    a(f"s_add_u32 s{sT1}, s{sT1}, {GG}")
    a(f"buffer_load_dword v{vG}, v{vT+2}, s[{S_WS}:{S_WS+3}], s{sT1} offen")
    a(f"v_lshlrev_b32 v{vT+1}, 10, v{vT+1}")
    a(f"v_lshrrev_b32 v{vT+2}, 5, v{vL}")
    a(f"v_lshl_add_u32 v{vT+1}, v{vT+2}, 5, v{vT+1}")
    a(f"s_lshl_b32 s{sT2}, s{sTB}, 15")
    a(f"s_lshl_b32 s{sT0}, s{sNB}, 6")
    a(f"s_add_u32 s{sT2}, s{sT2}, s{sT0}")
    mark(a, 2)
    for k in range(8):
        b = FR + 16 * k
        a(f"s_waitcnt vmcnt({(7-k)*4+3})")
        if k == 0:
            mark(a, 3)
        for ni in range(2):
            for ti in range(2):
                acc = ACC + 16 * (2 * ni + ti)
                a(mfma(acc, b + 4 * ni, b + 8 + 4 * ti, "0" if k == 0 else acc))
    a("s_nop 7\ns_nop 7")
    mark(a, 4)
    a(f"s_lshl_b32 s{sT0}, s{sWAVE}, 14")
    a(f"v_add_u32 v{vT+2}, s{sT0}, v{vT}")
    for q in range(4):
        for r4 in range(4):
            s = ACC + 16 * q + 4 * r4
            a(f"ds_write_b128 v{vT+2}, v[{s}:{s+3}] offset:{q*4096+r4*1024}")
    a(f"s_lshl_b32 s{sT0}, s{sWAVE}, 12")
    a(f"v_add_u32 v{vT+2}, s{sT0}, v{vT}")
    a("s_waitcnt lgkmcnt(0)")
    a("s_barrier")
    for w in range(4):
        for r4 in range(4):
            d = FR + 16 * w + 4 * r4
            a(f"ds_read_b128 v[{d}:{d+3}], v{vT+2} offset:{w*16384+r4*1024}")
    a("s_waitcnt vmcnt(0)")
    a(f"v_sub_f32 v{vG+1}, 1.0, v{vG}")
    for r in range(8):
        a(f"v_lshlrev_b32 v{ACC+2*r}, 16, v{BB+r}")
        a(f"v_and_b32 v{ACC+2*r+1}, 0xffff0000, v{BB+r}")
    a("s_waitcnt lgkmcnt(0)")
    for r in range(16):
        a(f"v_add_f32 v{FR+r}, v{FR+r}, v{FR+16+r}")
        a(f"v_add_f32 v{FR+32+r}, v{FR+32+r}, v{FR+48+r}")
    for r in range(16):
        a(f"v_add_f32 v{FR+r}, v{FR+r}, v{FR+32+r}")
    for r in range(16):
        a(f"v_mul_f32 v{FR+r}, v{vG}, v{FR+r}")
    for r in range(16):
        a(f"v_fma_f32 v{FR+r}, v{vG+1}, v{ACC+r}, v{FR+r}")
    for r in range(8):
        a(f"v_cvt_pk_bf16_f32 v{FR+16+r}, v{FR+2*r}, v{FR+2*r+1}")
    a(f"buffer_store_dwordx4 v[{FR+16}:{FR+19}], v{vT+1}, s[{S_OUT}:{S_OUT+3}], s{sT2} offen")
    a(f"buffer_store_dwordx4 v[{FR+20}:{FR+23}], v{vT+1}, s[{S_OUT}:{S_OUT+3}], s{sT2} offen offset:16")
    mark(a, 8)
    if P.ON:
        a("s_waitcnt vmcnt(0)")
    mark(a, 9)
    prof_end(a, 2, sWAVE, S_WS)
    a("L_k3_end:")
    a("s_endpgm")
K3_VGPRS = 224
K3_LDS = 65536
```

```python
import sys, os
sys.path.insert(0, os.path.dirname(os.path.abspath(__file__)))
from asmlib import *
import k1 as K1
import k2 as K2

NAME = "gated_mix__grouped_kv_mqa__dense_activation_mish__prompt"
REF = f"cdna_kernels/{NAME}.s.ref"

def build():
    hdr = []
    for line in open(REF).read().split("\n"):
        if line.startswith("; Override launch") or line.startswith("; grid=ceil") or line.startswith("; @launch"):
            continue
        if not line.startswith(";"):
            break
        hdr.append(line)
    hdr.append(f"; @launch kernel=gm_k1_kernel grid=(256,1,1) block=(256,1,1) lds={K1.K1_LDS}")
    hdr.append(f"; @launch kernel=gm_k2_kernel grid=(256,1,1) block=(768,1,1) lds={K2.K2_LDS}")
    hdr.append(f"; @launch kernel=gm_k3_kernel grid=(256,1,1) block=(256,1,1) lds={K2.K3_LDS}")
    a = A()
    a('.amdgcn_target "amdgcn-amd-amdhsa--gfx950"')
    a(".text")
    K1.k1(a, "gm_k1_kernel")
    K2.k2(a, "gm_k2_kernel")
    K2.k3(a, "gm_k3_kernel")
    a('.section .rodata,"a"')
    t = a.text()
    for n, v in (("gm_k1_kernel", K1.K1_VGPRS), ("gm_k2_kernel", K2.K2_VGPRS), ("gm_k3_kernel", K2.K3_VGPRS)):
        t += ".p2align 6\n" + desc(n, v)
    return "\n".join(hdr) + "\n" + t

if __name__ == "__main__":
    out = sys.argv[1] if len(sys.argv) > 1 else f"cdna_kernels/{NAME}.s"
    opts = sys.argv[2:]
    if "fb" in opts:
        K2.FORCE_FALLBACK = True
    if "prof" in opts:
        P.ON = True
    open(out, "w").write(build())
    print("wrote", out)
```

```python
from asmlib import *

S_WS = 4
sWAVE, sTP, sHG, sT0, sT1, sT2 = 8, 9, 10, 11, 16, 17
sMASK = 12
sIT = 14
sA0, sA1, sW0, sW1 = 20, 21, 22, 23
sTHL, sTHH = 24, 25
sBARM = 15
vL, vKA, vVA, vT = 1, 2, 3, 4
Q0, Q1 = 12, 16
KFR = 20
VFR = 28
PK = 44
SX, SY = 52, 68
O0, O1 = 84, 100
CM = 116
FACC = 12
RING = 76
K2_VGPRS = 208
RED = 131072
K2_LDS = RED + 32768
FORCE_FALLBACK = False
BAR2_KBL = 7
RED_IT = 5
FFN_PRE = 2


def unit(a, ab, kbl, first_iter_barrier=False):
    C, N = (SX, SY) if ab == 0 else (SY, SX)
    p = kbl & 1
    e = lambda i: a(f"v_exp_f32 v{C+i}, v{C+i}")
    c = lambda k: a(f"v_cvt_pk_bf16_f32 v{PK+k}, v{C+2*k}, v{C+2*k+1}")
    e(0); e(1)
    a(f"v_cvt_pk_bf16_f32 v{PK+7}, v{N+14}, v{N+15}")
    if ab == 0:
        a(mfma(N, KFR + 4 * p, Q1, "0"))
    else:
        a("s_waitcnt lgkmcnt(0)")
        a(mfma(N, KFR + 4 * (1 - p), Q0, "0"))
    e(2); e(3); c(0); e(4); e(5); c(1)
    if ab == 0:
        a(mfma(O1, VFR + 8 * (1 - p) + 4, PK + 4, O1))
        if first_iter_barrier:
            a(f"s_bitcmp1_b32 s{sBARM}, s{sIT}")
            a("s_cbranch_scc0 L_k2_nobar")
            a("s_barrier")
            a("L_k2_nobar:")
        q = 1 - p
        a(f"ds_read_b128 v[{KFR+4*q}:{KFR+4*q+3}], v{vKA} offset:{(kbl+1)*1024}")
        a(f"s_mov_b64 exec, s[{sMASK}:{sMASK+1}]")
        a(f"ds_read_b128 v[{VFR+8*q}:{VFR+8*q+3}], v{vVA} offset:{(kbl+1)*1024}")
        a(f"ds_read_b128 v[{VFR+8*q+4}:{VFR+8*q+7}], v{vVA} offset:{(kbl+1)*1024+512}")
        a("s_mov_b64 exec, -1")
    else:
        a(mfma(O0, VFR + 8 * p + 4, PK + 4, O0))
    e(6); e(7); c(2); e(8); e(9); c(3); e(10); e(11)
    O = O0 if ab == 0 else O1
    a(mfma(O, VFR + 8 * p, PK, O))
    c(4); e(12); e(13); c(5); e(14); e(15); c(6)


def fallback_block(a, Q, O, tag):
    m, t = vT, vT + 1
    a(f"v_mov_b32 v{m}, 0xff800000")
    a(f"v_lshlrev_b32 v{vKA}, 4, v{vL}")
    a(f"s_mov_b32 s{sIT}, 0")
    a(f"L_k2_fb1_{tag}:")
    a(f"ds_read_b128 v[{KFR}:{KFR+3}], v{vKA}")
    a(f"v_add_u32 v{vKA}, 1024, v{vKA}")
    a("s_waitcnt lgkmcnt(0)")
    a(mfma(SX, KFR, Q, "0"))
    a("s_nop 7\ns_nop 7")
    for r in range(8):
        a(f"v_max3_f32 v{m}, v{SX+2*r}, v{SX+2*r+1}, v{m}")
    a(f"s_add_u32 s{sIT}, s{sIT}, 1")
    a(f"s_cmp_lt_u32 s{sIT}, 64")
    a(f"s_cbranch_scc1 L_k2_fb1_{tag}")
    a(f"v_mov_b32 v{t}, v{m}")
    a("s_nop 1")
    a(f"v_permlane32_swap_b32 v{m}, v{t}")
    a("s_nop 1")
    a(f"v_max_f32 v{m}, v{m}, v{t}")
    for r in range(16):
        a(f"v_sub_f32 v{CM+r}, 0, v{m}")
        a(f"v_mov_b32 v{O+r}, 0")
    a(f"v_lshlrev_b32 v{vKA}, 4, v{vL}")
    a(f"v_and_b32 v{vVA}, 15, v{vL}")
    a(f"v_lshrrev_b32 v{t}, 5, v{vL}")
    a(f"v_lshl_add_u32 v{vVA}, v{t}, 4, v{vVA}")
    a(f"v_lshlrev_b32 v{vVA}, 4, v{vVA}")
    a(f"v_add_u32 v{vVA}, 0x10000, v{vVA}")
    a(f"s_mov_b32 s{sIT}, 0")
    a(f"L_k2_fb2_{tag}:")
    a(f"ds_read_b128 v[{KFR}:{KFR+3}], v{vKA}")
    a(f"s_mov_b64 exec, s[{sMASK}:{sMASK+1}]")
    a(f"ds_read_b128 v[{VFR}:{VFR+3}], v{vVA}")
    a(f"ds_read_b128 v[{VFR+4}:{VFR+7}], v{vVA} offset:512")
    a("s_mov_b64 exec, -1")
    a(f"v_add_u32 v{vKA}, 1024, v{vKA}")
    a(f"v_add_u32 v{vVA}, 1024, v{vVA}")
    a("s_waitcnt lgkmcnt(0)")
    a(mfma(SX, KFR, Q, CM))
    a("s_nop 7\ns_nop 7")
    for r in range(16):
        a(f"v_exp_f32 v{SX+r}, v{SX+r}")
    a("s_nop 0")
    for r in range(8):
        a(f"v_cvt_pk_bf16_f32 v{PK+r}, v{SX+2*r}, v{SX+2*r+1}")
    a("s_nop 1")
    a(mfma(O, VFR, PK, O))
    a(mfma(O, VFR + 4, PK + 4, O))
    a(f"s_add_u32 s{sIT}, s{sIT}, 1")
    a(f"s_cmp_lt_u32 s{sIT}, 64")
    a(f"s_cbranch_scc1 L_k2_fb2_{tag}")
    a("s_nop 7\ns_nop 7")


def attention(a):
    a("L_k2_attn:")
    a("s_setprio 2")
    a(f"s_lshl_b32 s{sT0}, s{sHG}, 2")
    a(f"s_add_u32 s{sT0}, s{sT0}, s{sWAVE}")
    a(f"s_lshl_b32 s{sT0}, s{sT0}, 10")
    a(f"s_lshl_b32 s{sT1}, s{sTP}, 16")
    a(f"s_add_u32 s{sT2}, s{sT0}, s{sT1}")
    a(f"s_add_u32 s{sT1}, s{sT2}, 32768")
    a(f"buffer_load_dwordx4 v[{Q0}:{Q0+3}], v{vT}, s[{S_WS}:{S_WS+3}], s{sT2} offen")
    a(f"buffer_load_dwordx4 v[{Q1}:{Q1+3}], v{vT}, s[{S_WS}:{S_WS+3}], s{sT1} offen")
    kv_dma(a)
    a(f"s_mov_b32 s{sMASK}, 0x0000ffff")
    a(f"s_mov_b32 s{sMASK+1}, 0x0000ffff")
    for r in range(16):
        a(f"v_mov_b32 v{VFR+r}, 0x3f803f80")
    for r in range(8):
        a(f"v_mov_b32 v{PK+r}, 0")
    for r in range(16):
        a(f"v_mov_b32 v{O0+r}, 0")
        a(f"v_mov_b32 v{O1+r}, 0")
    a(f"v_mov_b32 v{SY+14}, 0")
    a(f"v_mov_b32 v{SY+15}, 0")
    a(f"v_lshlrev_b32 v{vKA}, 4, v{vL}")
    a(f"v_and_b32 v{vVA}, 15, v{vL}")
    a(f"v_lshrrev_b32 v{vT+1}, 5, v{vL}")
    a(f"v_lshl_add_u32 v{vVA}, v{vT+1}, 4, v{vVA}")
    a(f"v_lshlrev_b32 v{vVA}, 4, v{vVA}")
    a(f"v_add_u32 v{vVA}, 0x10000, v{vVA}")
    a(f"s_mov_b32 s{sIT}, 0")
    a(f"s_mov_b32 s{sBARM}, {1 | (3 << RED_IT)}")
    mark(a, 2)
    a("s_waitcnt vmcnt(0)")
    a("s_barrier")
    mark(a, 3)
    a(f"ds_read_b128 v[{KFR}:{KFR+3}], v{vKA}")
    a(f"s_mov_b64 exec, s[{sMASK}:{sMASK+1}]")
    a(f"ds_read_b128 v[{VFR}:{VFR+3}], v{vVA}")
    a(f"ds_read_b128 v[{VFR+4}:{VFR+7}], v{vVA} offset:512")
    a("s_mov_b64 exec, -1")
    a("s_waitcnt lgkmcnt(0)")
    a(mfma(SX, KFR, Q0, "0"))
    a("s_nop 7\ns_nop 7")
    a("L_k2_loop:")
    for kbl in range(8):
        unit(a, 0, kbl, first_iter_barrier=(kbl == BAR2_KBL))
        if kbl == 7:
            a(f"v_add_u32 v{vKA}, 8192, v{vKA}")
            a(f"v_add_u32 v{vVA}, 8192, v{vVA}")
        unit(a, 1, kbl)
    if P.ON:
        a(f"s_cmp_eq_u32 s{sIT}, 0")
        a("s_cbranch_scc0 L_k2_nomark")
        mark(a, 4)
        a("L_k2_nomark:")
    a(f"s_add_u32 s{sIT}, s{sIT}, 1")
    a(f"s_cmp_lt_u32 s{sIT}, 8")
    a("s_cbranch_scc1 L_k2_loop")
    mark(a, 5)
    a(f"v_cvt_pk_bf16_f32 v{PK+7}, v{SY+14}, v{SY+15}")
    a("s_nop 1")
    a(mfma(O1, VFR + 8 + 4, PK + 4, O1))
    a("s_waitcnt lgkmcnt(0)")
    a("s_nop 7\ns_nop 7")
    a(f"s_mov_b32 s{sTHL}, {fhex(2.0**-30)}")
    a(f"s_mov_b32 s{sTHH}, {fhex(2.0**60)}")
    t = vT + 1
    a(f"v_mul_f32 v{t}, 0, v{O0+8}")
    for r in range(8):
        a(f"v_fma_f32 v{t}, v{O0+r}, 0, v{t}")
    a(f"v_fma_f32 v{t}, v{O1+8}, 0, v{t}")
    for r in range(8):
        a(f"v_fma_f32 v{t}, v{O1+r}, 0, v{t}")
    a(f"v_cmp_u_f32 vcc, v{t}, v{t}")
    a(f"v_min_f32 v{t+1}, v{O0+8}, v{O1+8}")
    a(f"v_max_f32 v{t+2}, v{O0+8}, v{O1+8}")
    a(f"v_cmp_gt_f32 s[26:27], s{sTHL}, v{t+1}")
    a(f"v_cmp_lt_f32 s[28:29], s{sTHH}, v{t+2}")
    a("s_nop 3")
    a("s_or_b64 vcc, vcc, s[26:27]")
    a("s_or_b64 vcc, vcc, s[28:29]")
    if FORCE_FALLBACK:
        a("s_mov_b64 vcc, -1")
    a("s_cbranch_vccz L_k2_norm")
    fallback_block(a, Q0, O0, "a")
    fallback_block(a, Q1, O1, "b")
    a("L_k2_norm:")
    a(f"v_lshlrev_b32 v{vT}, 4, v{vL}")
    for (O, so, pk) in ((O0, sT2, PK), (O1, sT1, PK + 4)):
        a(f"v_rcp_f32 v{t}, v{O+8}")
        a("s_nop 0")
        for r in range(8):
            a(f"v_mul_f32 v{O+r}, v{O+r}, v{t}")
        for r in range(4):
            a(f"v_cvt_pk_bf16_f32 v{pk+r}, v{O+2*r}, v{O+2*r+1}")
    a(f"s_add_u32 s{sT2}, s{sT2}, {OF}")
    a(f"s_add_u32 s{sT1}, s{sT1}, {OF}")
    a(f"buffer_store_dwordx4 v[{PK}:{PK+3}], v{vT}, s[{S_WS}:{S_WS+3}], s{sT2} offen")
    a(f"buffer_store_dwordx4 v[{PK+4}:{PK+7}], v{vT}, s[{S_WS}:{S_WS+3}], s{sT1} offen")
    mark(a, 8)
    if P.ON:
        a("s_waitcnt vmcnt(0)")
    mark(a, 9)
    prof_end(a, 1, sWAVE, S_WS)
    a("s_endpgm")


def kv_dma(a):
    a(f"s_lshl_b32 s{sA0}, s{sWAVE}, 10")
    a(f"s_add_u32 s{sA1}, s{sA0}, {KF}")
    for half in range(2):
        off = half * 65536
        a(f"s_add_u32 m0, s{sA0}, {off}" if off else f"s_mov_b32 m0, s{sA0}")
        a(f"s_add_u32 s{sW0}, s{sA1}, {off}")
        a(f"buffer_load_dwordx4 v{vT}, s[{S_WS}:{S_WS+3}], s{sW0} offen lds")


def kv_dma_rest(a):
    a(f"s_sub_u32 s{sA0}, s{sWAVE}, 4")
    a(f"s_lshl_b32 s{sA0}, s{sA0}, 11")
    a(f"s_add_u32 s{sA1}, s{sA0}, {KF}")
    for m in range(1, 8):
        for half in range(2):
            for d in range(2):
                off = m * 8192 + half * 65536 + d * 1024
                a(f"s_add_u32 m0, s{sA0}, {off}")
                a(f"s_add_u32 s{sW0}, s{sA1}, {off}")
                a(f"buffer_load_dwordx4 v{vT}, s[{S_WS}:{S_WS+3}], s{sW0} offen lds")


def ffn2(a):
    a("L_k2_ffn:")
    kv_dma(a)
    a("s_waitcnt vmcnt(0)")
    a("s_barrier")
    kv_dma_rest(a)
    a(f"s_sub_u32 s{sT0}, s{sWAVE}, 4")
    a(f"s_mul_i32 s{sT1}, s{sT0}, {28*1024}")
    a(f"s_mul_i32 s{sA0}, s{sTP}, {2*112*1024}")
    a(f"s_add_u32 s{sA0}, s{sA0}, s{sT1}")
    a(f"s_add_u32 s{sA0}, s{sA0}, {AF}")
    a(f"s_add_u32 s{sA1}, s{sA0}, {112*1024}")
    a(f"s_mul_i32 s{sW0}, s{sHG}, {2*112*1024}")
    a(f"s_add_u32 s{sW0}, s{sW0}, s{sT1}")
    a(f"s_add_u32 s{sW0}, s{sW0}, {W2F}")
    a(f"s_add_u32 s{sW1}, s{sW0}, {112*1024}")

    def loads(ks):
        b = RING + (ks & 7) * 16
        if ks and (ks & 3) == 0:
            for s in (sA0, sA1, sW0, sW1):
                a(f"s_add_u32 s{s}, s{s}, 4096")
        o = (ks & 3) * 1024
        for i, s in enumerate((sW0, sW1, sA0, sA1)):
            a(f"buffer_load_dwordx4 v[{b+4*i}:{b+4*i+3}], v{vT}, s[{S_WS}:{S_WS+3}], s{s} offen offset:{o}")

    mark(a, 2)
    for ks in range(FFN_PRE):
        loads(ks)
    a(f"s_waitcnt vmcnt({4*FFN_PRE})")
    a("s_barrier")
    mark(a, 3)
    for ks in range(FFN_PRE, 8):
        loads(ks)
    for ks in range(28):
        b = RING + (ks & 7) * 16
        left = min(27 - ks, 7) * 4
        a(f"s_waitcnt vmcnt({left})")
        if ks == 0:
            mark(a, 4)
        for ni in range(2):
            for ti in range(2):
                acc = FACC + 16 * (2 * ni + ti)
                a(mfma(acc, b + 4 * ni, b + 8 + 4 * ti, "0" if ks == 0 else acc))
        if ks + 8 < 28:
            loads(ks + 8)
    a("s_nop 7\ns_nop 7")
    mark(a, 5)
    a(f"v_add_u32 v{vT+1}, {RED}, v{vT}")
    a(f"s_sub_u32 s{sT0}, s{sWAVE}, 4")
    for v in range(4):
        if v < 3:
            a(f"s_cmp_lg_u32 s{sT0}, {v}")
            a(f"s_cbranch_scc1 L_k2_red{v+1}")
        ti, ni = v & 1, v >> 1
        for j in range(2):
            src = FACC + 16 * (2 * j + (1 - ti))
            for r4 in range(4):
                a(f"ds_write_b128 v{vT+1}, v[{src+4*r4}:{src+4*r4+3}] offset:{v*8192+j*4096+r4*1024}")
        a("s_waitcnt lgkmcnt(0)")
        a("s_barrier")
        for j in range(2):
            for r4 in range(4):
                d = RING + 16 * j + 4 * r4
                a(f"ds_read_b128 v[{d}:{d+3}], v{vT+1} offset:{(v^1)*8192+j*4096+r4*1024}")
        jo = 1 - ni
        a(f"s_waitcnt lgkmcnt({0})")
        qs = FACC + 16 * (2 * jo + ti)
        qk = FACC + 16 * (2 * ni + ti)
        for r in range(16):
            a(f"v_add_f32 v{qs+r}, v{qs+r}, v{RING+16*jo+r}")
        for r4 in range(4):
            a(f"ds_write_b128 v{vT+1}, v[{qs+4*r4}:{qs+4*r4+3}] offset:{(v^1)*8192+r4*1024}")
        for r in range(16):
            a(f"v_add_f32 v{qk+r}, v{qk+r}, v{RING+16*ni+r}")
        a("s_waitcnt lgkmcnt(0)")
        a("s_barrier")
        for r4 in range(4):
            d = RING + 4 * r4
            a(f"ds_read_b128 v[{d}:{d+3}], v{vT+1} offset:{(v^3)*8192+r4*1024}")
        a(f"s_lshl_b32 s{sT0}, s{sTP}, 16")
        a(f"s_lshl_b32 s{sT1}, s{sHG}, 12")
        a(f"s_add_u32 s{sT0}, s{sT0}, s{sT1}")
        a(f"s_add_u32 s{sT0}, s{sT0}, {BF + ti*32768 + ni*2048}")
        a("s_waitcnt lgkmcnt(0)")
        for r in range(16):
            a(f"v_add_f32 v{qk+r}, v{qk+r}, v{RING+r}")
        for r in range(8):
            a(f"v_cvt_pk_bf16_f32 v{RING+16+r}, v{qk+2*r}, v{qk+2*r+1}")
        a(f"buffer_store_dwordx4 v[{RING+16}:{RING+19}], v{vT}, s[{S_WS}:{S_WS+3}], s{sT0} offen")
        a(f"buffer_store_dwordx4 v[{RING+20}:{RING+23}], v{vT}, s[{S_WS}:{S_WS+3}], s{sT0} offen offset:1024")
        if v < 3:
            a("s_branch L_k2_fend")
            a(f"L_k2_red{v+1}:")
    a("L_k2_fend:")
    mark(a, 8)
    if P.ON:
        a("s_waitcnt vmcnt(0)")
    mark(a, 9)
    prof_end(a, 1, sWAVE, S_WS)
    a("s_endpgm")


def tile_map(a):
    a("s_and_b32 s3, s2, 7")
    a(f"s_lshr_b32 s{sT0}, s2, 3")
    a(f"s_and_b32 s{sHG}, s{sT0}, 7")
    a(f"s_lshr_b32 s{sT0}, s{sT0}, 3")
    a("s_lshl_b32 s3, s3, 2")
    a(f"s_add_u32 s{sTP}, s3, s{sT0}")


def k2(a, name):
    a(f".globl {name}\n.p2align 8\n.type {name},@function\n{name}:")
    a("s_cmp_ge_u32 s2, 256")
    a("s_cbranch_scc1 L_k2_end")
    mark(a, 0, real=True)
    mark(a, 1)
    a("s_load_dwordx2 s[18:19], s[0:1], 96")
    a(f"v_and_b32 v{vL}, 63, v0")
    a("v_lshrrev_b32 v2, 6, v0")
    tile_map(a)
    a(f"v_readfirstlane_b32 s{sWAVE}, v2")
    a(f"v_lshlrev_b32 v{vT}, 4, v{vL}")
    a("s_waitcnt lgkmcnt(0)")
    srd(a, S_WS, 18, WS_BYTES)
    a(f"s_cmp_ge_u32 s{sWAVE}, 4")
    a("s_cbranch_scc1 L_k2_ffn")
    attention(a)
    ffn2(a)
    a("L_k2_end:")
    a("s_endpgm")


def k3(a, name):
    S_OUT = 12
    FR = 20
    ACC = 148
    BB = 212
    vG = 220
    a(f".globl {name}\n.p2align 8\n.type {name},@function\n{name}:")
    a("s_cmp_ge_u32 s2, 256")
    a("s_cbranch_scc1 L_k3_end")
    mark(a, 0, real=True)
    mark(a, 1)
    a("s_load_dwordx2 s[18:19], s[0:1], 96")
    a("s_load_dwordx2 s[26:27], s[0:1], 80")
    a(f"v_and_b32 v{vL}, 63, v0")
    a("v_lshrrev_b32 v2, 6, v0")
    tile_map(a)
    a(f"v_readfirstlane_b32 s{sWAVE}, v2")
    a(f"v_lshlrev_b32 v{vT}, 4, v{vL}")
    a("s_waitcnt lgkmcnt(0)")
    srd(a, S_WS, 18, WS_BYTES)
    srd(a, S_OUT, 26, 2048 * 1024)
    a(f"s_lshl_b32 s{sT0}, s{sWAVE}, 13")
    a(f"s_lshl_b32 s{sA0}, s{sTP}, 16")
    a(f"s_add_u32 s{sA0}, s{sA0}, s{sT0}")
    a(f"s_add_u32 s{sA0}, s{sA0}, {OF}")
    a(f"s_add_u32 s{sA1}, s{sA0}, 32768")
    a(f"s_lshl_b32 s{sW0}, s{sHG}, 16")
    a(f"s_add_u32 s{sW0}, s{sW0}, s{sT0}")
    a(f"s_add_u32 s{sW0}, s{sW0}, {WOF}")
    a(f"s_add_u32 s{sW1}, s{sW0}, 32768")
    for k in range(8):
        b = FR + 16 * k
        if k == 4:
            for s in (sA0, sA1, sW0, sW1):
                a(f"s_add_u32 s{s}, s{s}, 4096")
        o = (k & 3) * 1024
        for i, s in enumerate((sW0, sW1, sA0, sA1)):
            a(f"buffer_load_dwordx4 v[{b+4*i}:{b+4*i+3}], v{vT}, s[{S_WS}:{S_WS+3}], s{s} offen offset:{o}")
    sTB, sNB = 28, 29
    a(f"s_and_b32 s{sT0}, s{sWAVE}, 1")
    a(f"s_lshl_b32 s{sTB}, s{sTP}, 1")
    a(f"s_add_u32 s{sTB}, s{sTB}, s{sT0}")
    a(f"s_lshr_b32 s{sT0}, s{sWAVE}, 1")
    a(f"s_lshl_b32 s{sNB}, s{sHG}, 1")
    a(f"s_add_u32 s{sNB}, s{sNB}, s{sT0}")
    a(f"s_lshl_b32 s{sT0}, s{sTB}, 15")
    a(f"s_lshl_b32 s{sT1}, s{sNB}, 11")
    a(f"s_add_u32 s{sT0}, s{sT0}, s{sT1}")
    a(f"s_add_u32 s{sT0}, s{sT0}, {BF}")
    a(f"buffer_load_dwordx4 v[{BB}:{BB+3}], v{vT}, s[{S_WS}:{S_WS+3}], s{sT0} offen")
    a(f"buffer_load_dwordx4 v[{BB+4}:{BB+7}], v{vT}, s[{S_WS}:{S_WS+3}], s{sT0} offen offset:1024")
    a(f"v_and_b32 v{vT+1}, 31, v{vL}")
    a(f"v_lshlrev_b32 v{vT+2}, 2, v{vT+1}")
    a(f"s_lshl_b32 s{sT1}, s{sTB}, 7")
    a(f"s_add_u32 s{sT1}, s{sT1}, {GG}")
    a(f"buffer_load_dword v{vG}, v{vT+2}, s[{S_WS}:{S_WS+3}], s{sT1} offen")
    a(f"v_lshlrev_b32 v{vT+1}, 10, v{vT+1}")
    a(f"v_lshrrev_b32 v{vT+2}, 5, v{vL}")
    a(f"v_lshl_add_u32 v{vT+1}, v{vT+2}, 5, v{vT+1}")
    a(f"s_lshl_b32 s{sT2}, s{sTB}, 15")
    a(f"s_lshl_b32 s{sT0}, s{sNB}, 6")
    a(f"s_add_u32 s{sT2}, s{sT2}, s{sT0}")
    mark(a, 2)
    for k in range(8):
        b = FR + 16 * k
        a(f"s_waitcnt vmcnt({(7-k)*4+3})")
        if k == 0:
            mark(a, 3)
        for ni in range(2):
            for ti in range(2):
                acc = ACC + 16 * (2 * ni + ti)
                a(mfma(acc, b + 4 * ni, b + 8 + 4 * ti, "0" if k == 0 else acc))
    a("s_nop 7\ns_nop 7")
    mark(a, 4)
    a(f"s_lshl_b32 s{sT0}, s{sWAVE}, 14")
    a(f"v_add_u32 v{vT+2}, s{sT0}, v{vT}")
    for q in range(4):
        for r4 in range(4):
            s = ACC + 16 * q + 4 * r4
            a(f"ds_write_b128 v{vT+2}, v[{s}:{s+3}] offset:{q*4096+r4*1024}")
    a(f"s_lshl_b32 s{sT0}, s{sWAVE}, 12")
    a(f"v_add_u32 v{vT+2}, s{sT0}, v{vT}")
    a("s_waitcnt lgkmcnt(0)")
    a("s_barrier")
    for w in range(4):
        for r4 in range(4):
            d = FR + 16 * w + 4 * r4
            a(f"ds_read_b128 v[{d}:{d+3}], v{vT+2} offset:{w*16384+r4*1024}")
    a("s_waitcnt vmcnt(0)")
    a(f"v_sub_f32 v{vG+1}, 1.0, v{vG}")
    for r in range(8):
        a(f"v_lshlrev_b32 v{ACC+2*r}, 16, v{BB+r}")
        a(f"v_and_b32 v{ACC+2*r+1}, 0xffff0000, v{BB+r}")
    a("s_waitcnt lgkmcnt(0)")
    for r in range(16):
        a(f"v_add_f32 v{FR+r}, v{FR+r}, v{FR+16+r}")
        a(f"v_add_f32 v{FR+32+r}, v{FR+32+r}, v{FR+48+r}")
    for r in range(16):
        a(f"v_add_f32 v{FR+r}, v{FR+r}, v{FR+32+r}")
    for r in range(16):
        a(f"v_mul_f32 v{FR+r}, v{vG}, v{FR+r}")
    for r in range(16):
        a(f"v_fma_f32 v{FR+r}, v{vG+1}, v{ACC+r}, v{FR+r}")
    for r in range(8):
        a(f"v_cvt_pk_bf16_f32 v{FR+16+r}, v{FR+2*r}, v{FR+2*r+1}")
    a(f"buffer_store_dwordx4 v[{FR+16}:{FR+19}], v{vT+1}, s[{S_OUT}:{S_OUT+3}], s{sT2} offen")
    a(f"buffer_store_dwordx4 v[{FR+20}:{FR+23}], v{vT+1}, s[{S_OUT}:{S_OUT+3}], s{sT2} offen offset:16")
    mark(a, 8)
    if P.ON:
        a("s_waitcnt vmcnt(0)")
    mark(a, 9)
    prof_end(a, 2, sWAVE, S_WS)
    a("L_k3_end:")
    a("s_endpgm")
K3_VGPRS = 224
K3_LDS = 65536
```

```python
from asmlib import *

S_WS = 4
sWAVE, sTP, sHG, sT0, sT1, sT2 = 8, 9, 10, 11, 16, 17
sMASK = 12
sIT = 14
sA0, sA1, sW0, sW1 = 20, 21, 22, 23
sTHL, sTHH = 24, 25
sBARM = 15
vL, vKA, vVA, vT = 1, 2, 3, 4
Q0 = 12
KFR = 16
VFR = 24
PK = 40
SX, SY = 48, 64
O0 = 80
CM = SY
WF = 96
FACC = 12
RING = 76
NRING = 5
K2_VGPRS = 160
NATT = 8
ATT_PRIO, FFN_PRIO = 0, 2
RED = 131072
K2_LDS = RED + 32768
FORCE_FALLBACK = False
BAR2_KBL = 6
RED_IT = 6
FFN_PRE = 2


def unit(a, kbl):
    p = kbl & 1
    C, N = (SX, SY) if p == 0 else (SY, SX)
    e = lambda i: a(f"v_exp_f32 v{C+i}, v{C+i}")
    c = lambda k: a(f"v_cvt_pk_bf16_f32 v{PK+k}, v{C+2*k}, v{C+2*k+1}")
    e(0); e(1)
    a(f"v_cvt_pk_bf16_f32 v{PK+7}, v{N+14}, v{N+15}")
    a("s_waitcnt lgkmcnt(0)")
    a(mfma(N, KFR + 4 * (1 - p), Q0, "0"))
    e(2); e(3); c(0); e(4); e(5); c(1)
    a(mfma(O0, VFR + 8 * (1 - p) + 4, PK + 4, O0))
    if kbl == BAR2_KBL:
        a(f"s_bitcmp1_b32 s{sBARM}, s{sIT}")
        a("s_cbranch_scc0 L_k2_nobar")
        a("s_barrier")
        a("L_k2_nobar:")
    q = 1 - p
    a(f"ds_read_b128 v[{KFR+4*p}:{KFR+4*p+3}], v{vKA} offset:{(kbl+2)*1024}")
    a(f"s_mov_b64 exec, s[{sMASK}:{sMASK+1}]")
    a(f"ds_read_b128 v[{VFR+8*q}:{VFR+8*q+3}], v{vVA} offset:{(kbl+1)*1024}")
    a(f"ds_read_b128 v[{VFR+8*q+4}:{VFR+8*q+7}], v{vVA} offset:{(kbl+1)*1024+512}")
    a("s_mov_b64 exec, -1")
    e(6); e(7); c(2)
    if kbl == 7:
        a(f"v_add_u32 v{vKA}, 8192, v{vKA}")
        a(f"v_add_u32 v{vVA}, 8192, v{vVA}")
    e(8); e(9); c(3); e(10); e(11)
    a(mfma(O0, VFR + 8 * p, PK, O0))
    c(4); e(12); e(13); c(5); e(14); e(15); c(6)


def fallback_block(a, Q, O, tag):
    m, t = vT, vT + 1
    a(f"v_mov_b32 v{m}, 0xff800000")
    a(f"v_lshlrev_b32 v{vKA}, 4, v{vL}")
    a(f"s_mov_b32 s{sIT}, 0")
    a(f"L_k2_fb1_{tag}:")
    a(f"ds_read_b128 v[{KFR}:{KFR+3}], v{vKA}")
    a(f"v_add_u32 v{vKA}, 1024, v{vKA}")
    a("s_waitcnt lgkmcnt(0)")
    a(mfma(SX, KFR, Q, "0"))
    a("s_nop 7\ns_nop 7")
    for r in range(8):
        a(f"v_max3_f32 v{m}, v{SX+2*r}, v{SX+2*r+1}, v{m}")
    a(f"s_add_u32 s{sIT}, s{sIT}, 1")
    a(f"s_cmp_lt_u32 s{sIT}, 64")
    a(f"s_cbranch_scc1 L_k2_fb1_{tag}")
    a(f"v_mov_b32 v{t}, v{m}")
    a("s_nop 1")
    a(f"v_permlane32_swap_b32 v{m}, v{t}")
    a("s_nop 1")
    a(f"v_max_f32 v{m}, v{m}, v{t}")
    for r in range(16):
        a(f"v_sub_f32 v{CM+r}, 0, v{m}")
        a(f"v_mov_b32 v{O+r}, 0")
    a(f"v_lshlrev_b32 v{vKA}, 4, v{vL}")
    a(f"v_and_b32 v{vVA}, 15, v{vL}")
    a(f"v_lshrrev_b32 v{t}, 5, v{vL}")
    a(f"v_lshl_add_u32 v{vVA}, v{t}, 4, v{vVA}")
    a(f"v_lshlrev_b32 v{vVA}, 4, v{vVA}")
    a(f"v_add_u32 v{vVA}, 0x10000, v{vVA}")
    a(f"s_mov_b32 s{sIT}, 0")
    a(f"L_k2_fb2_{tag}:")
    a(f"ds_read_b128 v[{KFR}:{KFR+3}], v{vKA}")
    a(f"s_mov_b64 exec, s[{sMASK}:{sMASK+1}]")
    a(f"ds_read_b128 v[{VFR}:{VFR+3}], v{vVA}")
    a(f"ds_read_b128 v[{VFR+4}:{VFR+7}], v{vVA} offset:512")
    a("s_mov_b64 exec, -1")
    a(f"v_add_u32 v{vKA}, 1024, v{vKA}")
    a(f"v_add_u32 v{vVA}, 1024, v{vVA}")
    a("s_waitcnt lgkmcnt(0)")
    a(mfma(SX, KFR, Q, CM))
    a("s_nop 7\ns_nop 7")
    for r in range(16):
        a(f"v_exp_f32 v{SX+r}, v{SX+r}")
    a("s_nop 0")
    for r in range(8):
        a(f"v_cvt_pk_bf16_f32 v{PK+r}, v{SX+2*r}, v{SX+2*r+1}")
    a("s_nop 1")
    a(mfma(O, VFR, PK, O))
    a(mfma(O, VFR + 4, PK + 4, O))
    a(f"s_add_u32 s{sIT}, s{sIT}, 1")
    a(f"s_cmp_lt_u32 s{sIT}, 64")
    a(f"s_cbranch_scc1 L_k2_fb2_{tag}")
    a("s_nop 7\ns_nop 7")


def attention(a):
    a("L_k2_attn:")
    a(f"s_setprio {ATT_PRIO}")
    a(f"s_and_b32 s{sT1}, s{sWAVE}, 3")
    a(f"s_lshl_b32 s{sT0}, s{sHG}, 2")
    a(f"s_add_u32 s{sT0}, s{sT0}, s{sT1}")
    a(f"s_lshl_b32 s{sT0}, s{sT0}, 10")
    a(f"s_lshr_b32 s{sT1}, s{sWAVE}, 2")
    a(f"s_lshl_b32 s{sT2}, s{sTP}, 1")
    a(f"s_add_u32 s{sT1}, s{sT1}, s{sT2}")
    a(f"s_lshl_b32 s{sT1}, s{sT1}, 15")
    a(f"s_add_u32 s{sT2}, s{sT0}, s{sT1}")
    a(f"buffer_load_dwordx4 v[{Q0}:{Q0+3}], v{vT}, s[{S_WS}:{S_WS+3}], s{sT2} offen")
    kv_dma(a)
    a(f"s_mov_b32 s{sMASK}, 0x0000ffff")
    a(f"s_mov_b32 s{sMASK+1}, 0x0000ffff")
    for r in range(16):
        a(f"v_mov_b32 v{VFR+r}, 0x3f803f80")
    for r in range(8):
        a(f"v_mov_b32 v{PK+r}, 0")
    for r in range(16):
        a(f"v_mov_b32 v{O0+r}, 0")
    a(f"v_mov_b32 v{SY+14}, 0")
    a(f"v_mov_b32 v{SY+15}, 0")
    a(f"v_lshlrev_b32 v{vKA}, 4, v{vL}")
    a(f"v_and_b32 v{vVA}, 15, v{vL}")
    a(f"v_lshrrev_b32 v{vT+1}, 5, v{vL}")
    a(f"v_lshl_add_u32 v{vVA}, v{vT+1}, 4, v{vVA}")
    a(f"v_lshlrev_b32 v{vVA}, 4, v{vVA}")
    a(f"v_add_u32 v{vVA}, 0x10000, v{vVA}")
    a(f"s_mov_b32 s{sIT}, 0")
    a(f"s_mov_b32 s{sBARM}, {1 | (3 << RED_IT)}")
    mark(a, 2)
    a("s_waitcnt vmcnt(0)")
    a("s_barrier")
    mark(a, 3)
    a(f"ds_read_b128 v[{KFR}:{KFR+3}], v{vKA}")
    a(f"ds_read_b128 v[{KFR+4}:{KFR+7}], v{vKA} offset:1024")
    a(f"s_mov_b64 exec, s[{sMASK}:{sMASK+1}]")
    a(f"ds_read_b128 v[{VFR}:{VFR+3}], v{vVA}")
    a(f"ds_read_b128 v[{VFR+4}:{VFR+7}], v{vVA} offset:512")
    a("s_mov_b64 exec, -1")
    a("s_waitcnt lgkmcnt(0)")
    a(mfma(SX, KFR, Q0, "0"))
    a("s_nop 7\ns_nop 7")
    a("L_k2_loop:")
    for kbl in range(8):
        unit(a, kbl)
    if P.ON:
        a(f"s_cmp_eq_u32 s{sIT}, 0")
        a("s_cbranch_scc0 L_k2_nomark")
        mark(a, 4)
        a("L_k2_nomark:")
    a(f"s_add_u32 s{sIT}, s{sIT}, 1")
    a(f"s_cmp_lt_u32 s{sIT}, 8")
    a("s_cbranch_scc1 L_k2_loop")
    mark(a, 5)
    a(f"v_cvt_pk_bf16_f32 v{PK+7}, v{SY+14}, v{SY+15}")
    a("s_nop 1")
    a(mfma(O0, VFR + 8 + 4, PK + 4, O0))
    a("s_waitcnt lgkmcnt(0)")
    a("s_nop 7\ns_nop 7")
    a(f"s_mov_b32 s{sTHL}, {fhex(2.0**-30)}")
    a(f"s_mov_b32 s{sTHH}, {fhex(2.0**60)}")
    t = vT + 1
    a(f"v_mul_f32 v{t}, 0, v{O0+8}")
    for r in range(8):
        a(f"v_fma_f32 v{t}, v{O0+r}, 0, v{t}")
    a(f"v_cmp_u_f32 vcc, v{t}, v{t}")
    a(f"v_cmp_gt_f32 s[26:27], s{sTHL}, v{O0+8}")
    a(f"v_cmp_lt_f32 s[28:29], s{sTHH}, v{O0+8}")
    a("s_nop 3")
    a("s_or_b64 vcc, vcc, s[26:27]")
    a("s_or_b64 vcc, vcc, s[28:29]")
    if FORCE_FALLBACK:
        a("s_mov_b64 vcc, -1")
    a("s_cbranch_vccz L_k2_norm")
    fallback_block(a, Q0, O0, "a")
    a("L_k2_norm:")
    a(f"v_lshlrev_b32 v{vT}, 4, v{vL}")
    a(f"v_rcp_f32 v{t}, v{O0+8}")
    a("s_nop 0")
    for r in range(8):
        a(f"v_mul_f32 v{O0+r}, v{O0+r}, v{t}")
    for r in range(4):
        a(f"v_cvt_pk_bf16_f32 v{PK+r}, v{O0+2*r}, v{O0+2*r+1}")
    a(f"s_add_u32 s{sT2}, s{sT2}, {OF}")
    a(f"buffer_store_dwordx4 v[{PK}:{PK+3}], v{vT}, s[{S_WS}:{S_WS+3}], s{sT2} offen")
    mark(a, 8)
    if P.ON:
        a("s_waitcnt vmcnt(0)")
    mark(a, 9)
    prof_end(a, 1, sWAVE, S_WS)
    a("s_endpgm")


def kv_dma(a):
    a(f"s_lshl_b32 s{sA0}, s{sWAVE}, 10")
    a(f"s_add_u32 s{sA1}, s{sA0}, {KF}")
    for half in range(2):
        off = half * 65536
        a(f"s_add_u32 m0, s{sA0}, {off}" if off else f"s_mov_b32 m0, s{sA0}")
        a(f"s_add_u32 s{sW0}, s{sA1}, {off}")
        a(f"buffer_load_dwordx4 v{vT}, s[{S_WS}:{S_WS+3}], s{sW0} offen lds")


def kv_dma_rest(a):
    a(f"s_sub_u32 s{sA0}, s{sWAVE}, {NATT}")
    a(f"s_lshl_b32 s{sA0}, s{sA0}, 11")
    a(f"s_add_u32 s{sA1}, s{sA0}, {KF}")
    for m in range(1, 8):
        for half in range(2):
            for d in range(2):
                off = m * 8192 + half * 65536 + d * 1024
                a(f"s_add_u32 m0, s{sA0}, {off}")
                a(f"s_add_u32 s{sW0}, s{sA1}, {off}")
                a(f"buffer_load_dwordx4 v{vT}, s[{S_WS}:{S_WS+3}], s{sW0} offen lds")


def ffn2(a):
    a("L_k2_ffn:")
    a(f"s_setprio {FFN_PRIO}")
    a("s_barrier")
    kv_dma_rest(a)
    a(f"s_sub_u32 s{sT0}, s{sWAVE}, {NATT}")
    a(f"s_mul_i32 s{sT1}, s{sT0}, {28*1024}")
    a(f"s_mul_i32 s{sA0}, s{sTP}, {2*112*1024}")
    a(f"s_add_u32 s{sA0}, s{sA0}, s{sT1}")
    a(f"s_add_u32 s{sA0}, s{sA0}, {AF}")
    a(f"s_add_u32 s{sA1}, s{sA0}, {112*1024}")
    a(f"s_mul_i32 s{sW0}, s{sHG}, {2*112*1024}")
    a(f"s_add_u32 s{sW0}, s{sW0}, s{sT1}")
    a(f"s_add_u32 s{sW0}, s{sW0}, {W2F}")
    a(f"s_add_u32 s{sW1}, s{sW0}, {112*1024}")

    def loads(ks):
        b = RING + (ks % NRING) * 16
        if ks and (ks & 3) == 0:
            for s in (sA0, sA1, sW0, sW1):
                a(f"s_add_u32 s{s}, s{s}, 4096")
        o = (ks & 3) * 1024
        for i, s in enumerate((sW0, sW1, sA0, sA1)):
            a(f"buffer_load_dwordx4 v[{b+4*i}:{b+4*i+3}], v{vT}, s[{S_WS}:{S_WS+3}], s{s} offen offset:{o}")

    mark(a, 2)
    for ks in range(FFN_PRE):
        loads(ks)
    a(f"s_waitcnt vmcnt({4*FFN_PRE})")
    a("s_barrier")
    mark(a, 3)
    for ks in range(FFN_PRE, NRING):
        loads(ks)
    for ks in range(28):
        b = RING + (ks % NRING) * 16
        left = min(27 - ks, NRING - 1) * 4
        a(f"s_waitcnt vmcnt({left})")
        if ks == 0:
            mark(a, 4)
        for ni in range(2):
            for ti in range(2):
                acc = FACC + 16 * (2 * ni + ti)
                a(mfma(acc, b + 4 * ni, b + 8 + 4 * ti, "0" if ks == 0 else acc))
        if ks + NRING < 28:
            loads(ks + NRING)
    a("s_nop 7\ns_nop 7")
    mark(a, 5)
    a(f"v_add_u32 v{vT+1}, {RED}, v{vT}")
    a(f"s_sub_u32 s{sT0}, s{sWAVE}, {NATT}")
    for v in range(4):
        if v < 3:
            a(f"s_cmp_lg_u32 s{sT0}, {v}")
            a(f"s_cbranch_scc1 L_k2_red{v+1}")
        ti, ni = v & 1, v >> 1
        for j in range(2):
            src = FACC + 16 * (2 * j + (1 - ti))
            for r4 in range(4):
                a(f"ds_write_b128 v{vT+1}, v[{src+4*r4}:{src+4*r4+3}] offset:{v*8192+j*4096+r4*1024}")
        a("s_waitcnt lgkmcnt(0)")
        a("s_barrier")
        for j in range(2):
            for r4 in range(4):
                d = RING + 16 * j + 4 * r4
                a(f"ds_read_b128 v[{d}:{d+3}], v{vT+1} offset:{(v^1)*8192+j*4096+r4*1024}")
        jo = 1 - ni
        a(f"s_waitcnt lgkmcnt({0})")
        qs = FACC + 16 * (2 * jo + ti)
        qk = FACC + 16 * (2 * ni + ti)
        for r in range(16):
            a(f"v_add_f32 v{qs+r}, v{qs+r}, v{RING+16*jo+r}")
        for r4 in range(4):
            a(f"ds_write_b128 v{vT+1}, v[{qs+4*r4}:{qs+4*r4+3}] offset:{(v^1)*8192+r4*1024}")
        for r in range(16):
            a(f"v_add_f32 v{qk+r}, v{qk+r}, v{RING+16*ni+r}")
        a("s_waitcnt lgkmcnt(0)")
        a("s_barrier")
        for r4 in range(4):
            d = RING + 4 * r4
            a(f"ds_read_b128 v[{d}:{d+3}], v{vT+1} offset:{(v^3)*8192+r4*1024}")
        a(f"s_lshl_b32 s{sT0}, s{sTP}, 16")
        a(f"s_lshl_b32 s{sT1}, s{sHG}, 12")
        a(f"s_add_u32 s{sT0}, s{sT0}, s{sT1}")
        a(f"s_add_u32 s{sT0}, s{sT0}, {BF + ti*32768 + ni*2048}")
        a("s_waitcnt lgkmcnt(0)")
        for r in range(16):
            a(f"v_add_f32 v{qk+r}, v{qk+r}, v{RING+r}")
        for r in range(8):
            a(f"v_cvt_pk_bf16_f32 v{RING+16+r}, v{qk+2*r}, v{qk+2*r+1}")
        a(f"buffer_store_dwordx4 v[{RING+16}:{RING+19}], v{vT}, s[{S_WS}:{S_WS+3}], s{sT0} offen")
        a(f"buffer_store_dwordx4 v[{RING+20}:{RING+23}], v{vT}, s[{S_WS}:{S_WS+3}], s{sT0} offen offset:1024")
        if v < 3:
            a("s_branch L_k2_fend")
            a(f"L_k2_red{v+1}:")
    a("L_k2_fend:")
    mark(a, 8)
    if P.ON:
        a("s_waitcnt vmcnt(0)")
    mark(a, 9)
    prof_end(a, 1, sWAVE, S_WS)
    a("s_endpgm")


def tile_map(a):
    a("s_and_b32 s3, s2, 7")
    a(f"s_lshr_b32 s{sT0}, s2, 3")
    a(f"s_and_b32 s{sHG}, s{sT0}, 7")
    a(f"s_lshr_b32 s{sT0}, s{sT0}, 3")
    a("s_lshl_b32 s3, s3, 2")
    a(f"s_add_u32 s{sTP}, s3, s{sT0}")


def k2(a, name):
    a(f".globl {name}\n.p2align 8\n.type {name},@function\n{name}:")
    a("s_cmp_ge_u32 s2, 256")
    a("s_cbranch_scc1 L_k2_end")
    mark(a, 0, real=True)
    mark(a, 1)
    a("s_load_dwordx2 s[18:19], s[0:1], 96")
    a(f"v_and_b32 v{vL}, 63, v0")
    a("v_lshrrev_b32 v2, 6, v0")
    tile_map(a)
    a(f"v_readfirstlane_b32 s{sWAVE}, v2")
    a(f"v_lshlrev_b32 v{vT}, 4, v{vL}")
    a("s_waitcnt lgkmcnt(0)")
    srd(a, S_WS, 18, WS_BYTES)
    a(f"s_cmp_ge_u32 s{sWAVE}, {NATT}")
    a("s_cbranch_scc1 L_k2_ffn")
    attention(a)
    ffn2(a)
    a("L_k2_end:")
    a("s_endpgm")


def k3(a, name):
    S_OUT = 12
    FR = 20
    ACC = 148
    BB = 212
    vG = 220
    a(f".globl {name}\n.p2align 8\n.type {name},@function\n{name}:")
    a("s_cmp_ge_u32 s2, 256")
    a("s_cbranch_scc1 L_k3_end")
    mark(a, 0, real=True)
    mark(a, 1)
    a("s_load_dwordx2 s[18:19], s[0:1], 96")
    a("s_load_dwordx2 s[26:27], s[0:1], 80")
    a(f"v_and_b32 v{vL}, 63, v0")
    a("v_lshrrev_b32 v2, 6, v0")
    tile_map(a)
    a(f"v_readfirstlane_b32 s{sWAVE}, v2")
    a(f"v_lshlrev_b32 v{vT}, 4, v{vL}")
    a("s_waitcnt lgkmcnt(0)")
    srd(a, S_WS, 18, WS_BYTES)
    srd(a, S_OUT, 26, 2048 * 1024)
    a(f"s_lshl_b32 s{sT0}, s{sWAVE}, 13")
    a(f"s_lshl_b32 s{sA0}, s{sTP}, 16")
    a(f"s_add_u32 s{sA0}, s{sA0}, s{sT0}")
    a(f"s_add_u32 s{sA0}, s{sA0}, {OF}")
    a(f"s_add_u32 s{sA1}, s{sA0}, 32768")
    a(f"s_lshl_b32 s{sW0}, s{sHG}, 16")
    a(f"s_add_u32 s{sW0}, s{sW0}, s{sT0}")
    a(f"s_add_u32 s{sW0}, s{sW0}, {WOF}")
    a(f"s_add_u32 s{sW1}, s{sW0}, 32768")
    for k in range(8):
        b = FR + 16 * k
        if k == 4:
            for s in (sA0, sA1, sW0, sW1):
                a(f"s_add_u32 s{s}, s{s}, 4096")
        o = (k & 3) * 1024
        for i, s in enumerate((sW0, sW1, sA0, sA1)):
            a(f"buffer_load_dwordx4 v[{b+4*i}:{b+4*i+3}], v{vT}, s[{S_WS}:{S_WS+3}], s{s} offen offset:{o}")
    sTB, sNB = 28, 29
    a(f"s_and_b32 s{sT0}, s{sWAVE}, 1")
    a(f"s_lshl_b32 s{sTB}, s{sTP}, 1")
    a(f"s_add_u32 s{sTB}, s{sTB}, s{sT0}")
    a(f"s_lshr_b32 s{sT0}, s{sWAVE}, 1")
    a(f"s_lshl_b32 s{sNB}, s{sHG}, 1")
    a(f"s_add_u32 s{sNB}, s{sNB}, s{sT0}")
    a(f"s_lshl_b32 s{sT0}, s{sTB}, 15")
    a(f"s_lshl_b32 s{sT1}, s{sNB}, 11")
    a(f"s_add_u32 s{sT0}, s{sT0}, s{sT1}")
    a(f"s_add_u32 s{sT0}, s{sT0}, {BF}")
    a(f"buffer_load_dwordx4 v[{BB}:{BB+3}], v{vT}, s[{S_WS}:{S_WS+3}], s{sT0} offen")
    a(f"buffer_load_dwordx4 v[{BB+4}:{BB+7}], v{vT}, s[{S_WS}:{S_WS+3}], s{sT0} offen offset:1024")
    a(f"v_and_b32 v{vT+1}, 31, v{vL}")
    a(f"v_lshlrev_b32 v{vT+2}, 2, v{vT+1}")
    a(f"s_lshl_b32 s{sT1}, s{sTB}, 7")
    a(f"s_add_u32 s{sT1}, s{sT1}, {GG}")
    a(f"buffer_load_dword v{vG}, v{vT+2}, s[{S_WS}:{S_WS+3}], s{sT1} offen")
    a(f"v_lshlrev_b32 v{vT+1}, 10, v{vT+1}")
    a(f"v_lshrrev_b32 v{vT+2}, 5, v{vL}")
    a(f"v_lshl_add_u32 v{vT+1}, v{vT+2}, 5, v{vT+1}")
    a(f"s_lshl_b32 s{sT2}, s{sTB}, 15")
    a(f"s_lshl_b32 s{sT0}, s{sNB}, 6")
    a(f"s_add_u32 s{sT2}, s{sT2}, s{sT0}")
    mark(a, 2)
    for k in range(8):
        b = FR + 16 * k
        a(f"s_waitcnt vmcnt({(7-k)*4+3})")
        if k == 0:
            mark(a, 3)
        for ni in range(2):
            for ti in range(2):
                acc = ACC + 16 * (2 * ni + ti)
                a(mfma(acc, b + 4 * ni, b + 8 + 4 * ti, "0" if k == 0 else acc))
    a("s_nop 7\ns_nop 7")
    mark(a, 4)
    a(f"s_lshl_b32 s{sT0}, s{sWAVE}, 14")
    a(f"v_add_u32 v{vT+2}, s{sT0}, v{vT}")
    for q in range(4):
        for r4 in range(4):
            s = ACC + 16 * q + 4 * r4
            a(f"ds_write_b128 v{vT+2}, v[{s}:{s+3}] offset:{q*4096+r4*1024}")
    a(f"s_lshl_b32 s{sT0}, s{sWAVE}, 12")
    a(f"v_add_u32 v{vT+2}, s{sT0}, v{vT}")
    a("s_waitcnt lgkmcnt(0)")
    a("s_barrier")
    for w in range(4):
        for r4 in range(4):
            d = FR + 16 * w + 4 * r4
            a(f"ds_read_b128 v[{d}:{d+3}], v{vT+2} offset:{w*16384+r4*1024}")
    a("s_waitcnt vmcnt(0)")
    a(f"v_sub_f32 v{vG+1}, 1.0, v{vG}")
    for r in range(8):
        a(f"v_lshlrev_b32 v{ACC+2*r}, 16, v{BB+r}")
        a(f"v_and_b32 v{ACC+2*r+1}, 0xffff0000, v{BB+r}")
    a("s_waitcnt lgkmcnt(0)")
    for r in range(16):
        a(f"v_add_f32 v{FR+r}, v{FR+r}, v{FR+16+r}")
        a(f"v_add_f32 v{FR+32+r}, v{FR+32+r}, v{FR+48+r}")
    for r in range(16):
        a(f"v_add_f32 v{FR+r}, v{FR+r}, v{FR+32+r}")
    for r in range(16):
        a(f"v_mul_f32 v{FR+r}, v{vG}, v{FR+r}")
    for r in range(16):
        a(f"v_fma_f32 v{FR+r}, v{vG+1}, v{ACC+r}, v{FR+r}")
    for r in range(8):
        a(f"v_cvt_pk_bf16_f32 v{FR+16+r}, v{FR+2*r}, v{FR+2*r+1}")
    a(f"buffer_store_dwordx4 v[{FR+16}:{FR+19}], v{vT+1}, s[{S_OUT}:{S_OUT+3}], s{sT2} offen")
    a(f"buffer_store_dwordx4 v[{FR+20}:{FR+23}], v{vT+1}, s[{S_OUT}:{S_OUT+3}], s{sT2} offen offset:16")
    mark(a, 8)
    if P.ON:
        a("s_waitcnt vmcnt(0)")
    mark(a, 9)
    prof_end(a, 2, sWAVE, S_WS)
    a("L_k3_end:")
    a("s_endpgm")
K3_VGPRS = 224
K3_LDS = 65536
```

```python
from asmlib import *

S_WS = 4
sWAVE, sTP, sHG, sT0, sT1, sT2 = 8, 9, 10, 11, 16, 17
sMASK = 12
sIT = 14
sA0, sA1, sW0, sW1 = 20, 21, 22, 23
sTHL, sTHH = 24, 25
sBARM = 15
vL, vKA, vVA, vT = 1, 2, 3, 4
Q0, Q1 = 12, 16
KFR = 20
VFR = 28
PK = 44
SX, SY = 52, 68
O0, O1 = 84, 100
CM = 116
FACC = 12
RING = 76
K2_VGPRS = 208
RED = 131072
K2_LDS = RED + 32768
FORCE_FALLBACK = False
import os
EXP = os.environ.get("K2EXP", "")
BAR2_KBL = 7
RED_IT = 5
FFN_PRE = 2


def unit(a, ab, kbl, first_iter_barrier=False):
    C, N = (SX, SY) if ab == 0 else (SY, SX)
    p = kbl & 1
    e = lambda i: a(f"v_exp_f32 v{C+i}, v{C+i}")
    c = lambda k: a(f"v_cvt_pk_bf16_f32 v{PK+k}, v{C+2*k}, v{C+2*k+1}")
    e(0); e(1)
    a(f"v_cvt_pk_bf16_f32 v{PK+7}, v{N+14}, v{N+15}")
    if ab == 0:
        a(mfma(N, KFR + 4 * p, Q1, "0"))
    else:
        a("s_waitcnt lgkmcnt(0)")
        a(mfma(N, KFR + 4 * (1 - p), Q0, "0"))
    e(2); e(3); c(0); e(4); e(5); c(1)
    if ab == 0:
        a(mfma(O1, VFR + 8 * (1 - p) + 4, PK + 4, O1))
        if first_iter_barrier:
            a(f"s_bitcmp1_b32 s{sBARM}, s{sIT}")
            a("s_cbranch_scc0 L_k2_nobar")
            a("s_barrier")
            a("L_k2_nobar:")
        q = 1 - p
        a(f"ds_read_b128 v[{KFR+4*q}:{KFR+4*q+3}], v{vKA} offset:{(kbl+1)*1024}")
        a(f"s_mov_b64 exec, s[{sMASK}:{sMASK+1}]")
        a(f"ds_read_b128 v[{VFR+8*q}:{VFR+8*q+3}], v{vVA} offset:{(kbl+1)*1024}")
        a(f"ds_read_b128 v[{VFR+8*q+4}:{VFR+8*q+7}], v{vVA} offset:{(kbl+1)*1024+512}")
        a("s_mov_b64 exec, -1")
    else:
        a(mfma(O0, VFR + 8 * p + 4, PK + 4, O0))
    e(6); e(7); c(2); e(8); e(9); c(3); e(10); e(11)
    O = O0 if ab == 0 else O1
    a(mfma(O, VFR + 8 * p, PK, O))
    c(4); e(12); e(13); c(5); e(14); e(15); c(6)


def fallback_block(a, Q, O, tag):
    m, t = vT, vT + 1
    a(f"v_mov_b32 v{m}, 0xff800000")
    a(f"v_lshlrev_b32 v{vKA}, 4, v{vL}")
    a(f"s_mov_b32 s{sIT}, 0")
    a(f"L_k2_fb1_{tag}:")
    a(f"ds_read_b128 v[{KFR}:{KFR+3}], v{vKA}")
    a(f"v_add_u32 v{vKA}, 1024, v{vKA}")
    a("s_waitcnt lgkmcnt(0)")
    a(mfma(SX, KFR, Q, "0"))
    a("s_nop 7\ns_nop 7")
    for r in range(8):
        a(f"v_max3_f32 v{m}, v{SX+2*r}, v{SX+2*r+1}, v{m}")
    a(f"s_add_u32 s{sIT}, s{sIT}, 1")
    a(f"s_cmp_lt_u32 s{sIT}, 64")
    a(f"s_cbranch_scc1 L_k2_fb1_{tag}")
    a(f"v_mov_b32 v{t}, v{m}")
    a("s_nop 1")
    a(f"v_permlane32_swap_b32 v{m}, v{t}")
    a("s_nop 1")
    a(f"v_max_f32 v{m}, v{m}, v{t}")
    for r in range(16):
        a(f"v_sub_f32 v{CM+r}, 0, v{m}")
        a(f"v_mov_b32 v{O+r}, 0")
    a(f"v_lshlrev_b32 v{vKA}, 4, v{vL}")
    a(f"v_and_b32 v{vVA}, 15, v{vL}")
    a(f"v_lshrrev_b32 v{t}, 5, v{vL}")
    a(f"v_lshl_add_u32 v{vVA}, v{t}, 4, v{vVA}")
    a(f"v_lshlrev_b32 v{vVA}, 4, v{vVA}")
    a(f"v_add_u32 v{vVA}, 0x10000, v{vVA}")
    a(f"s_mov_b32 s{sIT}, 0")
    a(f"L_k2_fb2_{tag}:")
    a(f"ds_read_b128 v[{KFR}:{KFR+3}], v{vKA}")
    a(f"s_mov_b64 exec, s[{sMASK}:{sMASK+1}]")
    a(f"ds_read_b128 v[{VFR}:{VFR+3}], v{vVA}")
    a(f"ds_read_b128 v[{VFR+4}:{VFR+7}], v{vVA} offset:512")
    a("s_mov_b64 exec, -1")
    a(f"v_add_u32 v{vKA}, 1024, v{vKA}")
    a(f"v_add_u32 v{vVA}, 1024, v{vVA}")
    a("s_waitcnt lgkmcnt(0)")
    a(mfma(SX, KFR, Q, CM))
    a("s_nop 7\ns_nop 7")
    for r in range(16):
        a(f"v_exp_f32 v{SX+r}, v{SX+r}")
    a("s_nop 0")
    for r in range(8):
        a(f"v_cvt_pk_bf16_f32 v{PK+r}, v{SX+2*r}, v{SX+2*r+1}")
    a("s_nop 1")
    a(mfma(O, VFR, PK, O))
    a(mfma(O, VFR + 4, PK + 4, O))
    a(f"s_add_u32 s{sIT}, s{sIT}, 1")
    a(f"s_cmp_lt_u32 s{sIT}, 64")
    a(f"s_cbranch_scc1 L_k2_fb2_{tag}")
    a("s_nop 7\ns_nop 7")


def attention(a):
    a("L_k2_attn:")
    a("s_setprio 2")
    a(f"s_lshl_b32 s{sT0}, s{sHG}, 2")
    a(f"s_add_u32 s{sT0}, s{sT0}, s{sWAVE}")
    a(f"s_lshl_b32 s{sT0}, s{sT0}, 10")
    a(f"s_lshl_b32 s{sT1}, s{sTP}, 16")
    a(f"s_add_u32 s{sT2}, s{sT0}, s{sT1}")
    a(f"s_add_u32 s{sT1}, s{sT2}, 32768")
    a(f"buffer_load_dwordx4 v[{Q0}:{Q0+3}], v{vT}, s[{S_WS}:{S_WS+3}], s{sT2} offen")
    a(f"buffer_load_dwordx4 v[{Q1}:{Q1+3}], v{vT}, s[{S_WS}:{S_WS+3}], s{sT1} offen")
    kv_dma(a)
    a(f"s_mov_b32 s{sMASK}, 0x0000ffff")
    a(f"s_mov_b32 s{sMASK+1}, 0x0000ffff")
    a(f"v_and_b32 v{vT+1}, 27, v{vL}")
    a(f"v_cmp_eq_u32 vcc, 16, v{vT+1}")
    a(f"v_mov_b32 v{vT+2}, 0x3f803f80")
    a(f"v_cndmask_b32 v{vT+1}, 0, v{vT+2}, vcc")
    for r in range(16):
        a(f"v_mov_b32 v{VFR+r}, v{vT+1}")
    for r in range(8):
        a(f"v_mov_b32 v{PK+r}, 0")
    for r in range(16):
        a(f"v_mov_b32 v{O0+r}, 0")
        a(f"v_mov_b32 v{O1+r}, 0")
    a(f"v_mov_b32 v{SY+14}, 0")
    a(f"v_mov_b32 v{SY+15}, 0")
    a(f"v_lshlrev_b32 v{vKA}, 4, v{vL}")
    a(f"v_and_b32 v{vVA}, 15, v{vL}")
    a(f"v_lshrrev_b32 v{vT+1}, 5, v{vL}")
    a(f"v_lshl_add_u32 v{vVA}, v{vT+1}, 4, v{vVA}")
    a(f"v_lshlrev_b32 v{vVA}, 4, v{vVA}")
    a(f"v_add_u32 v{vVA}, 0x10000, v{vVA}")
    a(f"s_mov_b32 s{sIT}, 0")
    a(f"s_mov_b32 s{sBARM}, {1 | (3 << RED_IT)}")
    mark(a, 2)
    a("s_waitcnt vmcnt(0)")
    a("s_barrier")
    mark(a, 3)
    a(f"ds_read_b128 v[{KFR}:{KFR+3}], v{vKA}")
    a(f"s_mov_b64 exec, s[{sMASK}:{sMASK+1}]")
    a(f"ds_read_b128 v[{VFR}:{VFR+3}], v{vVA}")
    a(f"ds_read_b128 v[{VFR+4}:{VFR+7}], v{vVA} offset:512")
    a("s_mov_b64 exec, -1")
    a("s_waitcnt lgkmcnt(0)")
    a(mfma(SX, KFR, Q0, "0"))
    a("s_nop 7\ns_nop 7")
    a("L_k2_loop:")
    for kbl in range(8):
        unit(a, 0, kbl, first_iter_barrier=(kbl == BAR2_KBL))
        if kbl == 7:
            a(f"v_add_u32 v{vKA}, 8192, v{vKA}")
            a(f"v_add_u32 v{vVA}, 8192, v{vVA}")
        unit(a, 1, kbl)
    if P.ON:
        a(f"s_cmp_eq_u32 s{sIT}, 0")
        a("s_cbranch_scc0 L_k2_nomark")
        mark(a, 4)
        a("L_k2_nomark:")
    a(f"s_add_u32 s{sIT}, s{sIT}, 1")
    a(f"s_cmp_lt_u32 s{sIT}, 8")
    a("s_cbranch_scc1 L_k2_loop")
    mark(a, 5)
    a(f"v_cvt_pk_bf16_f32 v{PK+7}, v{SY+14}, v{SY+15}")
    a("s_nop 1")
    a(mfma(O1, VFR + 8 + 4, PK + 4, O1))
    a("s_waitcnt lgkmcnt(0)")
    a("s_nop 7\ns_nop 7")
    a(f"s_mov_b32 s{sTHL}, {fhex(2.0**-30)}")
    a(f"s_mov_b32 s{sTHH}, {fhex(2.0**60)}")
    t = vT + 1
    a(f"v_mul_f32 v{t}, 0, v{O0+8}")
    for r in range(8):
        a(f"v_fma_f32 v{t}, v{O0+r}, 0, v{t}")
    a(f"v_fma_f32 v{t}, v{O1+8}, 0, v{t}")
    for r in range(8):
        a(f"v_fma_f32 v{t}, v{O1+r}, 0, v{t}")
    a(f"v_cmp_u_f32 vcc, v{t}, v{t}")
    a(f"v_min_f32 v{t+1}, v{O0+8}, v{O1+8}")
    a(f"v_max_f32 v{t+2}, v{O0+8}, v{O1+8}")
    a(f"v_cmp_gt_f32 s[26:27], s{sTHL}, v{t+1}")
    a(f"v_cmp_lt_f32 s[28:29], s{sTHH}, v{t+2}")
    a("s_nop 3")
    a("s_or_b64 vcc, vcc, s[26:27]")
    a("s_or_b64 vcc, vcc, s[28:29]")
    if FORCE_FALLBACK:
        a("s_mov_b64 vcc, -1")
    a("s_cbranch_vccz L_k2_norm")
    fallback_block(a, Q0, O0, "a")
    fallback_block(a, Q1, O1, "b")
    a("L_k2_norm:")
    a(f"v_lshlrev_b32 v{vT}, 4, v{vL}")
    for (O, so, pk) in ((O0, sT2, PK), (O1, sT1, PK + 4)):
        a(f"v_rcp_f32 v{t}, v{O+8}")
        a("s_nop 0")
        for r in range(8):
            a(f"v_mul_f32 v{O+r}, v{O+r}, v{t}")
        for r in range(4):
            a(f"v_cvt_pk_bf16_f32 v{pk+r}, v{O+2*r}, v{O+2*r+1}")
    a(f"s_add_u32 s{sT2}, s{sT2}, {OF}")
    a(f"s_add_u32 s{sT1}, s{sT1}, {OF}")
    sc = " sc1" if "S" in EXP else ""
    a(f"buffer_store_dwordx4 v[{PK}:{PK+3}], v{vT}, s[{S_WS}:{S_WS+3}], s{sT2} offen{sc}")
    a(f"buffer_store_dwordx4 v[{PK+4}:{PK+7}], v{vT}, s[{S_WS}:{S_WS+3}], s{sT1} offen{sc}")
    mark(a, 8)
    if P.ON:
        a("s_waitcnt vmcnt(0)")
    mark(a, 9)
    prof_end(a, 1, sWAVE, S_WS)
    a("s_endpgm")


def kv_dma(a):
    a(f"s_lshl_b32 s{sA0}, s{sWAVE}, 10")
    a(f"s_add_u32 s{sA1}, s{sA0}, {KF}")
    for half in range(2):
        off = half * 65536
        a(f"s_add_u32 m0, s{sA0}, {off}" if off else f"s_mov_b32 m0, s{sA0}")
        a(f"s_add_u32 s{sW0}, s{sA1}, {off}")
        a(f"buffer_load_dwordx4 v{vT}, s[{S_WS}:{S_WS+3}], s{sW0} offen lds")


def kv_dma_rest(a):
    a(f"s_sub_u32 s{sA0}, s{sWAVE}, 4")
    a(f"s_lshl_b32 s{sA0}, s{sA0}, 11")
    a(f"s_add_u32 s{sA1}, s{sA0}, {KF}")
    for m in range(1, 8):
        for half in range(2):
            for d in range(2):
                off = m * 8192 + half * 65536 + d * 1024
                a(f"s_add_u32 m0, s{sA0}, {off}")
                a(f"s_add_u32 s{sW0}, s{sA1}, {off}")
                a(f"buffer_load_dwordx4 v{vT}, s[{S_WS}:{S_WS+3}], s{sW0} offen lds")


def ffn2(a):
    a("L_k2_ffn:")
    kv_dma(a)
    a("s_waitcnt vmcnt(0)")
    a("s_barrier")
    kv_dma_rest(a)
    a(f"s_sub_u32 s{sT0}, s{sWAVE}, 4")
    a(f"s_mul_i32 s{sT1}, s{sT0}, {28*1024}")
    a(f"s_mul_i32 s{sA0}, s{sTP}, {2*112*1024}")
    a(f"s_add_u32 s{sA0}, s{sA0}, s{sT1}")
    a(f"s_add_u32 s{sA0}, s{sA0}, {AF}")
    a(f"s_add_u32 s{sA1}, s{sA0}, {112*1024}")
    a(f"s_mul_i32 s{sW0}, s{sHG}, {2*112*1024}")
    a(f"s_add_u32 s{sW0}, s{sW0}, s{sT1}")
    a(f"s_add_u32 s{sW0}, s{sW0}, {W2F}")
    a(f"s_add_u32 s{sW1}, s{sW0}, {112*1024}")

    def loads(ks):
        b = RING + (ks & 7) * 16
        if ks and (ks & 3) == 0:
            for s in (sA0, sA1, sW0, sW1):
                a(f"s_add_u32 s{s}, s{s}, 4096")
        o = (ks & 3) * 1024
        for i, s in enumerate((sW0, sW1, sA0, sA1)):
            a(f"buffer_load_dwordx4 v[{b+4*i}:{b+4*i+3}], v{vT}, s[{S_WS}:{S_WS+3}], s{s} offen offset:{o}")

    mark(a, 2)
    for ks in range(FFN_PRE):
        loads(ks)
    a(f"s_waitcnt vmcnt({4*FFN_PRE})")
    a("s_barrier")
    mark(a, 3)
    for ks in range(FFN_PRE, 8):
        loads(ks)
    for ks in range(28):
        b = RING + (ks & 7) * 16
        left = min(27 - ks, 7) * 4
        a(f"s_waitcnt vmcnt({left})")
        if ks == 0:
            mark(a, 4)
        for ni in range(2):
            for ti in range(2):
                acc = FACC + 16 * (2 * ni + ti)
                a(mfma(acc, b + 4 * ni, b + 8 + 4 * ti, "0" if ks == 0 else acc))
        if ks + 8 < 28:
            loads(ks + 8)
    a("s_nop 7\ns_nop 7")
    mark(a, 5)
    a(f"v_add_u32 v{vT+1}, {RED}, v{vT}")
    a(f"s_sub_u32 s{sT0}, s{sWAVE}, 4")
    for v in range(4):
        if v < 3:
            a(f"s_cmp_lg_u32 s{sT0}, {v}")
            a(f"s_cbranch_scc1 L_k2_red{v+1}")
        ti, ni = v & 1, v >> 1
        for j in range(2):
            src = FACC + 16 * (2 * j + (1 - ti))
            for r4 in range(4):
                a(f"ds_write_b128 v{vT+1}, v[{src+4*r4}:{src+4*r4+3}] offset:{v*8192+j*4096+r4*1024}")
        a("s_waitcnt lgkmcnt(0)")
        a("s_barrier")
        for j in range(2):
            for r4 in range(4):
                d = RING + 16 * j + 4 * r4
                a(f"ds_read_b128 v[{d}:{d+3}], v{vT+1} offset:{(v^1)*8192+j*4096+r4*1024}")
        jo = 1 - ni
        a(f"s_waitcnt lgkmcnt({0})")
        qs = FACC + 16 * (2 * jo + ti)
        qk = FACC + 16 * (2 * ni + ti)
        for r in range(16):
            a(f"v_add_f32 v{qs+r}, v{qs+r}, v{RING+16*jo+r}")
        for r4 in range(4):
            a(f"ds_write_b128 v{vT+1}, v[{qs+4*r4}:{qs+4*r4+3}] offset:{(v^1)*8192+r4*1024}")
        for r in range(16):
            a(f"v_add_f32 v{qk+r}, v{qk+r}, v{RING+16*ni+r}")
        a("s_waitcnt lgkmcnt(0)")
        a("s_barrier")
        for r4 in range(4):
            d = RING + 4 * r4
            a(f"ds_read_b128 v[{d}:{d+3}], v{vT+1} offset:{(v^3)*8192+r4*1024}")
        a(f"s_lshl_b32 s{sT0}, s{sTP}, 16")
        a(f"s_lshl_b32 s{sT1}, s{sHG}, 12")
        a(f"s_add_u32 s{sT0}, s{sT0}, s{sT1}")
        a(f"s_add_u32 s{sT0}, s{sT0}, {BF + ti*32768 + ni*2048}")
        a("s_waitcnt lgkmcnt(0)")
        for r in range(16):
            a(f"v_add_f32 v{qk+r}, v{qk+r}, v{RING+r}")
        for r in range(8):
            a(f"v_cvt_pk_bf16_f32 v{RING+16+r}, v{qk+2*r}, v{qk+2*r+1}")
        a(f"buffer_store_dwordx4 v[{RING+16}:{RING+19}], v{vT}, s[{S_WS}:{S_WS+3}], s{sT0} offen")
        a(f"buffer_store_dwordx4 v[{RING+20}:{RING+23}], v{vT}, s[{S_WS}:{S_WS+3}], s{sT0} offen offset:1024")
        if v < 3:
            a("s_branch L_k2_fend")
            a(f"L_k2_red{v+1}:")
    a("L_k2_fend:")
    mark(a, 8)
    if P.ON:
        a("s_waitcnt vmcnt(0)")
    mark(a, 9)
    prof_end(a, 1, sWAVE, S_WS)
    a("s_endpgm")


def tile_map(a):
    a("s_and_b32 s3, s2, 7")
    a(f"s_lshr_b32 s{sT0}, s2, 3")
    a(f"s_and_b32 s{sHG}, s{sT0}, 7")
    a(f"s_lshr_b32 s{sT0}, s{sT0}, 3")
    a("s_lshl_b32 s3, s3, 2")
    a(f"s_add_u32 s{sTP}, s3, s{sT0}")


def k2(a, name):
    a(f".globl {name}\n.p2align 8\n.type {name},@function\n{name}:")
    a("s_cmp_ge_u32 s2, 256")
    a("s_cbranch_scc1 L_k2_end")
    mark(a, 0, real=True)
    mark(a, 1)
    a("s_load_dwordx2 s[18:19], s[0:1], 96")
    a(f"v_and_b32 v{vL}, 63, v0")
    a("v_lshrrev_b32 v2, 6, v0")
    tile_map(a)
    a(f"v_readfirstlane_b32 s{sWAVE}, v2")
    a(f"v_lshlrev_b32 v{vT}, 4, v{vL}")
    a("s_waitcnt lgkmcnt(0)")
    srd(a, S_WS, 18, WS_BYTES)
    a(f"s_cmp_ge_u32 s{sWAVE}, 4")
    a("s_cbranch_scc1 L_k2_ffn")
    attention(a)
    ffn2(a)
    a("L_k2_end:")
    a("s_endpgm")


def k3(a, name):
    S_OUT = 12
    FR = 20
    ACC = 148
    BB = 212
    vG = 220
    a(f".globl {name}\n.p2align 8\n.type {name},@function\n{name}:")
    a("s_cmp_ge_u32 s2, 256")
    a("s_cbranch_scc1 L_k3_end")
    mark(a, 0, real=True)
    mark(a, 1)
    a("s_load_dwordx2 s[18:19], s[0:1], 96")
    a("s_load_dwordx2 s[26:27], s[0:1], 80")
    a(f"v_and_b32 v{vL}, 63, v0")
    a("v_lshrrev_b32 v2, 6, v0")
    tile_map(a)
    a(f"v_readfirstlane_b32 s{sWAVE}, v2")
    a(f"v_lshlrev_b32 v{vT}, 4, v{vL}")
    a("s_waitcnt lgkmcnt(0)")
    srd(a, S_WS, 18, WS_BYTES)
    srd(a, S_OUT, 26, 2048 * 1024)
    a(f"s_lshl_b32 s{sT0}, s{sWAVE}, 13")
    a(f"s_lshl_b32 s{sA0}, s{sTP}, 16")
    a(f"s_add_u32 s{sA0}, s{sA0}, s{sT0}")
    a(f"s_add_u32 s{sA0}, s{sA0}, {OF}")
    a(f"s_add_u32 s{sA1}, s{sA0}, 32768")
    a(f"s_lshl_b32 s{sW0}, s{sHG}, 16")
    a(f"s_add_u32 s{sW0}, s{sW0}, s{sT0}")
    a(f"s_add_u32 s{sW0}, s{sW0}, {WOF}")
    a(f"s_add_u32 s{sW1}, s{sW0}, 32768")
    for k in range(8):
        b = FR + 16 * k
        if k == 4:
            for s in (sA0, sA1, sW0, sW1):
                a(f"s_add_u32 s{s}, s{s}, 4096")
        o = (k & 3) * 1024
        for i, s in enumerate((sW0, sW1, sA0, sA1)):
            sc = " sc1" if ("S" in EXP and i >= 2) else ""
            a(f"buffer_load_dwordx4 v[{b+4*i}:{b+4*i+3}], v{vT}, s[{S_WS}:{S_WS+3}], s{s} offen offset:{o}{sc}")
    sTB, sNB = 28, 29
    a(f"s_and_b32 s{sT0}, s{sWAVE}, 1")
    a(f"s_lshl_b32 s{sTB}, s{sTP}, 1")
    a(f"s_add_u32 s{sTB}, s{sTB}, s{sT0}")
    a(f"s_lshr_b32 s{sT0}, s{sWAVE}, 1")
    a(f"s_lshl_b32 s{sNB}, s{sHG}, 1")
    a(f"s_add_u32 s{sNB}, s{sNB}, s{sT0}")
    a(f"s_lshl_b32 s{sT0}, s{sTB}, 15")
    a(f"s_lshl_b32 s{sT1}, s{sNB}, 11")
    a(f"s_add_u32 s{sT0}, s{sT0}, s{sT1}")
    a(f"s_add_u32 s{sT0}, s{sT0}, {BF}")
    a(f"buffer_load_dwordx4 v[{BB}:{BB+3}], v{vT}, s[{S_WS}:{S_WS+3}], s{sT0} offen")
    a(f"buffer_load_dwordx4 v[{BB+4}:{BB+7}], v{vT}, s[{S_WS}:{S_WS+3}], s{sT0} offen offset:1024")
    a(f"v_and_b32 v{vT+1}, 31, v{vL}")
    a(f"v_lshlrev_b32 v{vT+2}, 2, v{vT+1}")
    a(f"s_lshl_b32 s{sT1}, s{sTB}, 7")
    a(f"s_add_u32 s{sT1}, s{sT1}, {GG}")
    a(f"buffer_load_dword v{vG}, v{vT+2}, s[{S_WS}:{S_WS+3}], s{sT1} offen")
    a(f"v_lshlrev_b32 v{vT+1}, 10, v{vT+1}")
    a(f"v_lshrrev_b32 v{vT+2}, 5, v{vL}")
    a(f"v_lshl_add_u32 v{vT+1}, v{vT+2}, 5, v{vT+1}")
    a(f"s_lshl_b32 s{sT2}, s{sTB}, 15")
    a(f"s_lshl_b32 s{sT0}, s{sNB}, 6")
    a(f"s_add_u32 s{sT2}, s{sT2}, s{sT0}")
    mark(a, 2)
    for k in range(8):
        b = FR + 16 * k
        a(f"s_waitcnt vmcnt({(7-k)*4+3})")
        if k == 0:
            mark(a, 3)
        for ni in range(2):
            for ti in range(2):
                acc = ACC + 16 * (2 * ni + ti)
                a(mfma(acc, b + 4 * ni, b + 8 + 4 * ti, "0" if k == 0 else acc))
    a("s_nop 7\ns_nop 7")
    mark(a, 4)
    a(f"s_lshl_b32 s{sT0}, s{sWAVE}, 14")
    a(f"v_add_u32 v{vT+2}, s{sT0}, v{vT}")
    for q in range(4):
        for r4 in range(4):
            s = ACC + 16 * q + 4 * r4
            a(f"ds_write_b128 v{vT+2}, v[{s}:{s+3}] offset:{q*4096+r4*1024}")
    a(f"s_lshl_b32 s{sT0}, s{sWAVE}, 12")
    a(f"v_add_u32 v{vT+2}, s{sT0}, v{vT}")
    a("s_waitcnt lgkmcnt(0)")
    a("s_barrier")
    for w in range(4):
        for r4 in range(4):
            d = FR + 16 * w + 4 * r4
            a(f"ds_read_b128 v[{d}:{d+3}], v{vT+2} offset:{w*16384+r4*1024}")
    a("s_waitcnt vmcnt(0)")
    a(f"v_sub_f32 v{vG+1}, 1.0, v{vG}")
    for r in range(8):
        a(f"v_lshlrev_b32 v{ACC+2*r}, 16, v{BB+r}")
        a(f"v_and_b32 v{ACC+2*r+1}, 0xffff0000, v{BB+r}")
    a("s_waitcnt lgkmcnt(0)")
    for r in range(16):
        a(f"v_add_f32 v{FR+r}, v{FR+r}, v{FR+16+r}")
        a(f"v_add_f32 v{FR+32+r}, v{FR+32+r}, v{FR+48+r}")
    for r in range(16):
        a(f"v_add_f32 v{FR+r}, v{FR+r}, v{FR+32+r}")
    for r in range(16):
        a(f"v_mul_f32 v{FR+r}, v{vG}, v{FR+r}")
    for r in range(16):
        a(f"v_fma_f32 v{FR+r}, v{vG+1}, v{ACC+r}, v{FR+r}")
    for r in range(8):
        a(f"v_cvt_pk_bf16_f32 v{FR+16+r}, v{FR+2*r}, v{FR+2*r+1}")
    a(f"buffer_store_dwordx4 v[{FR+16}:{FR+19}], v{vT+1}, s[{S_OUT}:{S_OUT+3}], s{sT2} offen")
    a(f"buffer_store_dwordx4 v[{FR+20}:{FR+23}], v{vT+1}, s[{S_OUT}:{S_OUT+3}], s{sT2} offen offset:16")
    mark(a, 8)
    if P.ON:
        a("s_waitcnt vmcnt(0)")
    mark(a, 9)
    prof_end(a, 2, sWAVE, S_WS)
    a("L_k3_end:")
    a("s_endpgm")
K3_VGPRS = 224
K3_LDS = 65536
```

```python
from asmlib import *

S_X, S_WQ, S_W1, S_WS, S_B1, S_GT = 4, 8, 12, 16, 20, 24
sWAVE, sTT, sJ, sTB = 28, 29, 30, 31
sXs, sPs, sFs, sT0 = 32, 33, 34, 35
sXd, sPd, sFd, sT1, sT2, sT3, sK0, sK1 = 58, 59, 60, 61, 62, 63, 64, 65
sP2s, sP2d = 66, 67
vL = 1
vXdma = 2
vPdma = 6
vFdma = 7
vXrd = 8
vPrd = 12
vFrd = 13
vT = 17
ACC = 20
XF = 100
WF = 108
EP = 148
K1_VGPRS = 200
K1_LDS = 144 * 1088

XBASE, FBASE, PBASE = 0, 65536, 131072
P0B, P1B, WKB, WVB, GTB = 65536, 81920, 98304, 98304 + 16384 + 128, 132096


def dma(a, m0base, m0imm, voff, srd_, soff, soffimm=None, tmp=sT1):
    if m0imm:
        a(f"s_add_u32 m0, s{m0base}, {m0imm}")
    else:
        a(f"s_mov_b32 m0, s{m0base}")
    if soffimm:
        a(f"s_add_u32 s{tmp}, s{soff}, {soffimm}")
        so = tmp
    else:
        a("s_nop 0")
        so = soff
    a(f"buffer_load_dwordx4 v{voff}, s[{srd_}:{srd_+3}], s{so} offen lds")


def common_addr(a):
    a(f"v_lshrrev_b32 v{vT}, 3, v{vL}")
    a(f"v_lshrrev_b32 v{vT+1}, 4, v{vL}")
    a(f"v_and_b32 v{vT+2}, 7, v{vL}")
    for q in range(4):
        d = vXdma + q
        a(f"v_add_u32 v{d}, {(4*q)&7}, v{vT+1}")
        a(f"v_xor_b32 v{d}, v{d}, v{vT+2}")
        a(f"v_lshlrev_b32 v{d}, 4, v{d}")
        a(f"v_add_u32 v{EP}, {8*q}, v{vT}")
        a(f"v_lshlrev_b32 v{EP}, 10, v{EP}")
        a(f"v_add_u32 v{d}, v{d}, v{EP}")
    a(f"v_and_b32 v{vT}, 31, v{vL}")
    a(f"v_lshrrev_b32 v{vT+1}, 5, v{vL}")
    a(f"v_lshrrev_b32 v{vT+2}, 1, v{vT}")
    a(f"v_and_b32 v{vT+2}, 7, v{vT+2}")
    a(f"v_xor_b32 v{vT+2}, v{vT+2}, v{vT+1}")
    a(f"v_lshlrev_b32 v{vT}, 7, v{vT}")
    a(f"s_lshl_b32 s{sT0}, s{sWAVE}, 12")
    a(f"v_add_u32 v{vT}, s{sT0}, v{vT}")
    for s in range(4):
        d = vXrd + s
        a(f"v_xor_b32 v{d}, {2*s}, v{vT+2}")
        a(f"v_lshlrev_b32 v{d}, 4, v{d}")
        a(f"v_add_u32 v{d}, v{d}, v{vT}")
    a(f"v_lshrrev_b32 v{vT}, 2, v{vL}")
    a(f"v_lshlrev_b32 v{vT}, 10, v{vT}")
    a(f"v_and_b32 v{vT+1}, 3, v{vL}")
    a(f"v_lshlrev_b32 v{vT+1}, 4, v{vT+1}")
    a(f"v_add_u32 v{vPdma}, v{vT}, v{vT+1}")
    a(f"v_lshrrev_b32 v{vT}, 5, v{vL}")
    a(f"v_lshlrev_b32 v{vT}, 3, v{vT}")
    a(f"v_bfe_u32 v{vT+1}, v{vL}, 2, 2")
    a(f"v_add_u32 v{vT}, v{vT}, v{vT+1}")
    a(f"v_bfe_u32 v{vT+2}, v{vL}, 4, 1")
    a(f"v_and_b32 v{EP}, 3, v{vL}")
    a(f"v_lshlrev_b32 v{EP}, 3, v{EP}")
    a(f"v_lshl_add_u32 v{EP}, v{vT+2}, 5, v{EP}")
    a(f"v_lshl_add_u32 v{vPrd}, v{vT}, 6, v{EP}")
    a(f"s_lshl_b32 s{sXs}, s{sTB}, 15")
    a(f"s_lshl_b32 s{sXd}, s{sWAVE}, 12")


def x_dmas(c):
    b = c & 3
    out = []
    for q in range(4):
        out.append(lambda a, q=q: dma(a, sXd, XBASE + b * 16384 + q * 1024, vXdma + q, S_X, sXs, c * 128))
    return out


def kloop(a, nchunk_dma, chunk_dmas, reads, mfmas, pre_issued):
    n = nchunk_dma
    mark(a, 2)
    a(f"s_waitcnt vmcnt({3*n})")
    a("s_barrier")
    mark(a, 3)
    rd = reads(0)
    for grp in rd:
        for r in grp:
            a(r)
    cnt = [len(x) for x in rd]
    pending = []
    for g in range(32):
        c, s = g >> 2, g & 3
        if g in (8, 16, 24):
            mark(a, 3 + g // 8)
        nxt = reads(g + 1) if g < 31 else [[] for _ in range(5)]
        mf = mfmas(g)
        for t in range(5):
            later = sum(cnt[t + 1:]) + sum(len(x) for x in nxt[:t])
            a(f"s_waitcnt lgkmcnt({later})")
            a(mf[t])
            if t == 0 and s == 3 and c < 7:
                left = {0: 2 * n, 6: 0}.get(c, n)
                a(f"s_waitcnt vmcnt({left})")
                a("s_barrier")
                if 1 <= c <= 4:
                    pending = chunk_dmas(c + 3)
            for r in nxt[t]:
                a(r)
            if pending and not (t == 0 and s == 3):
                pending.pop(0)(a)
        assert not (s == 2 and pending), "dma left"
    a("s_nop 7")
    a("s_nop 7")
    mark(a, 7)


def q_epilogue(a, acc, head0_imm):
    for r in range(16):
        a(f"v_mul_f32 v{acc+r}, s{sK1}, v{acc+r}")
    for r in range(8):
        a(f"v_cvt_pk_bf16_f32 v{EP+r}, v{acc+2*r}, v{acc+2*r+1}")
    a(f"buffer_store_dwordx4 v[{EP}:{EP+3}], v{vT}, s[{S_WS}:{S_WS+3}], s{sT2} offen offset:{head0_imm}")
    a(f"buffer_store_dwordx4 v[{EP+4}:{EP+7}], v{vT}, s[{S_WS}:{S_WS+3}], s{sT2} offen offset:{head0_imm+1024}")


def k1_main(a):
    a("L_k1_main:")
    srd(a, S_W1, 48, 512 * 3584)
    srd(a, S_B1, 50, 3584)
    common_addr(a)
    a(f"v_add_u32 v{vPrd}, {PBASE}, v{vPrd}")
    a(f"v_lshl_add_u32 v{EP+1}, v{vT}, 8, v{EP}")
    a(f"v_add_u32 v{EP+1}, {FBASE}, v{EP+1}")
    for t in range(4):
        a(f"v_xor_b32 v{vFrd+t}, {t}, v{vT+1}")
        a(f"v_lshl_add_u32 v{vFrd+t}, v{vFrd+t}, 6, v{EP+1}")
    a(f"v_lshrrev_b32 v{vT}, 4, v{vL}")
    a(f"v_and_b32 v{vT+1}, 15, v{vL}")
    a(f"v_lshlrev_b32 v{vT+2}, 2, v{vT}")
    a(f"v_xor_b32 v{vT+1}, v{vT+1}, v{vT+2}")
    a(f"v_lshlrev_b32 v{vT+1}, 4, v{vT+1}")
    a(f"v_mul_u32_u24 v{vT}, 3584, v{vT}")
    a(f"v_add_u32 v{vFdma}, v{vT}, v{vT+1}")
    a(f"s_lshl_b32 s{sPs}, s{sWAVE}, 14")
    a(f"s_lshl_b32 s{sT0}, s{sJ}, 6")
    a(f"s_add_u32 s{sPs}, s{sPs}, s{sT0}")
    a(f"s_lshl_b32 s{sPd}, s{sWAVE}, 10")
    a(f"s_add_u32 s{sPd}, s{sPd}, {PBASE}")
    a(f"s_mul_i32 s{sFs}, s{sWAVE}, {16*3584}")
    a(f"s_lshl_b32 s{sT0}, s{sJ}, 8")
    a(f"s_add_u32 s{sFs}, s{sFs}, s{sT0}")
    a(f"s_lshl_b32 s{sFd}, s{sWAVE}, 12")
    a(f"s_add_u32 s{sFd}, s{sFd}, {FBASE}")

    def chunk_dmas(c):
        b = c & 3
        out = x_dmas(c)
        out.append(lambda a: dma(a, sPd, b * 4096, vPdma, S_WQ, sPs, c * 65536))
        for d in range(4):
            out.append(lambda a, d=d: dma(a, sFd, b * 16384 + d * 1024, vFdma, S_W1, sFs, (c * 64 + d * 4) * 3584))
        return out

    a(f"v_lshrrev_b32 v{vT}, 5, v{vL}")
    a(f"v_lshlrev_b32 v{vT}, 3, v{vT}")
    for u in range(4):
        for q in range(4):
            d = WF + (u * 4 + q) * 2
            a(f"buffer_load_dwordx2 v[{d}:{d+1}], v{vT}, s[{S_B1}:{S_B1+3}], s{sT0} offen offset:{64*u+16*q}")
    for c in range(4):
        for f in chunk_dmas(c):
            f(a)
    a("s_waitcnt vmcnt(36)")
    for u in range(4):
        for q in range(4):
            d = WF + (u * 4 + q) * 2
            o = ACC + 16 * (1 + u) + 4 * q
            a(f"v_lshlrev_b32 v{o}, 16, v{d}")
            a(f"v_and_b32 v{o+1}, 0xffff0000, v{d}")
            a(f"v_lshlrev_b32 v{o+2}, 16, v{d+1}")
            a(f"v_and_b32 v{o+3}, 0xffff0000, v{d+1}")

    def reads(g):
        c, s = g >> 2, g & 3
        b, p = c & 3, g & 1
        w = WF + p * 20
        grp = [[f"ds_read_b128 v[{XF+4*p}:{XF+4*p+3}], v{vXrd+s} offset:{b*16384}",
                f"ds_read_b64_tr_b16 v[{w}:{w+1}], v{vPrd} offset:{b*4096+s*1024}",
                f"ds_read_b64_tr_b16 v[{w+2}:{w+3}], v{vPrd} offset:{b*4096+s*1024+256}"]]
        for t in range(4):
            ww = w + 4 * (1 + t)
            grp.append([f"ds_read_b64_tr_b16 v[{ww}:{ww+1}], v{vFrd+t} offset:{b*16384+s*4096}",
                        f"ds_read_b64_tr_b16 v[{ww+2}:{ww+3}], v{vFrd+t} offset:{b*16384+s*4096+1024}"])
        return grp

    def mfmas(g):
        p = g & 1
        out = []
        for t in range(5):
            cc = "0" if (g == 0 and t == 0) else ACC + 16 * t
            out.append(mfma(ACC + 16 * t, WF + p * 20 + 4 * t, XF + 4 * p, cc))
        return out

    kloop(a, 9, chunk_dmas, reads, mfmas, 4)

    a(f"v_lshlrev_b32 v{vT}, 4, v{vL}")
    a(f"s_mov_b32 s{sK0}, {fhex(LOG2E)}")
    a(f"s_mov_b32 s{sK1}, {fhex(0.25*LOG2E)}")
    a(f"s_lshl_b32 s{sT2}, s{sTB}, 15")
    a(f"s_lshl_b32 s{sT0}, s{sJ}, 11")
    a(f"s_add_u32 s{sT2}, s{sT2}, s{sT0}")
    q_epilogue(a, ACC, 0)
    a(f"s_mul_i32 s{sT3}, s{sTB}, {112*1024}")
    a(f"s_lshl_b32 s{sT0}, s{sJ}, 13")
    a(f"s_add_u32 s{sT3}, s{sT3}, s{sT0}")
    a(f"s_add_u32 s{sT3}, s{sT3}, {AF}")
    T1, T2 = EP + 8, EP + 16
    for u in range(4):
        acc = ACC + 16 * (1 + u)
        pk = EP + 24 + (u & 1) * 8
        for half in range(2):
            x0 = acc + 8 * half
            for i in range(8):
                a(f"v_mul_f32 v{T1+i}, s{sK0}, v{x0+i}")
            for i in range(8):
                a(f"v_exp_f32 v{T1+i}, v{T1+i}")
            for i in range(8):
                a(f"v_add_f32 v{T2+i}, 2.0, v{T1+i}")
            for i in range(8):
                a(f"v_fma_f32 v{T2+i}, v{T1+i}, v{T2+i}, 2.0")
            for i in range(8):
                a(f"v_rcp_f32 v{T2+i}, v{T2+i}")
            for i in range(8):
                a(f"v_mul_f32 v{T2+i}, v{x0+i}, v{T2+i}")
            for i in range(8):
                a(f"v_fma_f32 v{x0+i}, v{T2+i}, -2.0, v{x0+i}")
            for i in range(4):
                a(f"v_cvt_pk_bf16_f32 v{pk+4*half+i}, v{x0+2*i}, v{x0+2*i+1}")
        if u == 2:
            a(f"s_add_u32 s{sT3}, s{sT3}, 4096")
        o = (u & 1) * 2048
        a(f"buffer_store_dwordx4 v[{pk}:{pk+3}], v{vT}, s[{S_WS}:{S_WS+3}], s{sT3} offen offset:{o}")
        a(f"buffer_store_dwordx4 v[{pk+4}:{pk+7}], v{vT}, s[{S_WS}:{S_WS+3}], s{sT3} offen offset:{o+1024}")
    mark(a, 8)
    if P.ON:
        a("s_waitcnt vmcnt(0)")
    mark(a, 9)
    prof_end(a, 0, sWAVE, S_WS)
    a("s_endpgm")


def k1_special(a):
    a("L_k1_special:")
    srd(a, S_W1, 40, 16384)
    srd(a, S_B1, 42, 16384)
    srd(a, S_GT, 54, 1024)
    common_addr(a)
    vKV, vGT, vP1 = vFrd, vFrd + 1, vFrd + 2
    a(f"v_and_b32 v{EP+1}, 3, v{vL}")
    a(f"v_lshlrev_b32 v{EP+1}, 3, v{EP+1}")
    a(f"v_lshl_add_u32 v{EP+1}, v{vT}, 5, v{EP+1}")
    a(f"v_mul_u32_u24 v{EP+2}, {WVB-WKB}, v{vT+2}")
    a(f"v_add_u32 v{EP+1}, v{EP+1}, v{EP+2}")
    a(f"v_add_u32 v{vKV}, {WKB}, v{EP+1}")
    a(f"v_lshrrev_b32 v{EP+1}, 5, v{vL}")
    a(f"v_lshlrev_b32 v{EP+1}, 4, v{EP+1}")
    a(f"v_add_u32 v{vGT}, {GTB}, v{EP+1}")
    a(f"v_add_u32 v{vP1}, {P1B}, v{vPrd}")
    a(f"v_add_u32 v{vPrd}, {P0B}, v{vPrd}")
    a(f"s_lshl_b32 s{sPs}, s{sWAVE}, 14")
    a(f"s_add_u32 s{sP2s}, s{sPs}, 960")
    a(f"s_add_u32 s{sPs}, s{sPs}, 896")
    a(f"s_lshl_b32 s{sPd}, s{sWAVE}, 10")
    a(f"s_add_u32 s{sP2d}, s{sPd}, {P1B}")
    a(f"s_add_u32 s{sPd}, s{sPd}, {P0B}")
    a(f"v_lshlrev_b32 v{vFdma}, 4, v{vL}")
    a(f"s_lshl_b32 s{sFs}, s{sWAVE}, 12")
    a(f"s_add_u32 s{sFd}, s{sFs}, {WKB}")
    a(f"s_add_u32 s{sT2}, s{sFs}, {WVB}")
    for d in range(4):
        dma(a, sFd, d * 1024, vFdma, S_W1, sFs, d * 1024)
    for d in range(4):
        dma(a, sT2, d * 1024, vFdma, S_B1, sFs, d * 1024)
    a(f"s_mov_b32 s{sT2}, {GTB}")
    a(f"s_mov_b32 s{sT3}, 0")
    dma(a, sT2, 0, vFdma, S_GT, sT3)

    def chunk_dmas(c):
        b = c & 3
        out = x_dmas(c)
        out.append(lambda a: dma(a, sPd, b * 4096, vPdma, S_WQ, sPs, c * 65536))
        out.append(lambda a: dma(a, sP2d, b * 4096, vPdma, S_WQ, sP2s, c * 65536))
        return out

    for c in range(4):
        for f in chunk_dmas(c):
            f(a)

    def reads(g):
        c, s = g >> 2, g & 3
        b, p = c & 3, g & 1
        w = WF + p * 20
        grp = [[f"ds_read_b128 v[{XF+4*p}:{XF+4*p+3}], v{vXrd+s} offset:{b*16384}",
                f"ds_read_b64_tr_b16 v[{w}:{w+1}], v{vPrd} offset:{b*4096+s*1024}",
                f"ds_read_b64_tr_b16 v[{w+2}:{w+3}], v{vPrd} offset:{b*4096+s*1024+256}"],
               [f"ds_read_b64_tr_b16 v[{w+4}:{w+5}], v{vP1} offset:{b*4096+s*1024}",
                f"ds_read_b64_tr_b16 v[{w+6}:{w+7}], v{vP1} offset:{b*4096+s*1024+256}"],
               [f"ds_read_b64_tr_b16 v[{w+8}:{w+9}], v{vKV} offset:{g*512}",
                f"ds_read_b64_tr_b16 v[{w+10}:{w+11}], v{vKV} offset:{g*512+128}"],
               [],
               [f"ds_read_b128 v[{w+16}:{w+19}], v{vGT} offset:{g*32}"]]
        return grp

    def mfmas(g):
        p = g & 1
        w = WF + p * 20
        x = XF + 4 * p
        cc = lambda t: "0" if g == 0 else ACC + 16 * t
        return [mfma(ACC, w, x, cc(0)), mfma(ACC + 16, w + 4, x, cc(1)), mfma(ACC + 32, w + 8, x, cc(2)),
                mfma(ACC + 48, x, w + 8, cc(3)), mfma(ACC + 64, w + 16, x, cc(4))]

    kloop(a, 6, chunk_dmas, reads, mfmas, 4)

    a(f"v_lshlrev_b32 v{vT}, 4, v{vL}")
    a(f"s_mov_b32 s{sK0}, {fhex(-LOG2E)}")
    a(f"s_mov_b32 s{sK1}, {fhex(0.25*LOG2E)}")
    a(f"s_lshl_b32 s{sT2}, s{sTB}, 15")
    a(f"s_add_u32 s{sT2}, s{sT2}, {28*1024}")
    q_epilogue(a, ACC, 0)
    a("s_nop 1")
    q_epilogue(a, ACC + 16, 2048)
    K0 = EP + 8
    for r in range(4):
        a(f"v_cvt_pk_bf16_f32 v{K0+r}, v{ACC+32+2*r}, v{ACC+32+2*r+1}")
    a(f"s_lshl_b32 s{sT2}, s{sTB}, 10")
    a(f"s_add_u32 s{sT3}, s{sT2}, {KF}")
    a(f"buffer_store_dwordx4 v[{K0}:{K0+3}], v{vT}, s[{S_WS}:{S_WS+3}], s{sT3} offen")
    V0 = EP + 12
    for r in range(8):
        a(f"v_cvt_pk_bf16_f32 v{V0+r}, v{ACC+48+2*r}, v{ACC+48+2*r+1}")
    a(f"v_and_b32 v{vT+1}, 15, v{vL}")
    a(f"v_lshrrev_b32 v{vT+2}, 5, v{vL}")
    a(f"v_lshl_add_u32 v{vT+1}, v{vT+2}, 4, v{vT+1}")
    a(f"v_lshlrev_b32 v{vT+1}, 4, v{vT+1}")
    a(f"s_add_u32 s{sT3}, s{sT2}, {VF}")
    G0 = EP + 20
    a(f"v_mul_f32 v{G0}, s{sK0}, v{ACC+64}")
    a(f"v_exp_f32 v{G0}, v{G0}")
    a("s_nop 0")
    a(f"v_add_f32 v{G0}, 1.0, v{G0}")
    a(f"v_rcp_f32 v{G0}, v{G0}")
    a(f"v_and_b32 v{G0+1}, 31, v{vL}")
    a(f"v_lshlrev_b32 v{G0+1}, 2, v{G0+1}")
    a(f"s_lshl_b32 s{sT2}, s{sTB}, 7")
    a(f"s_add_u32 s{sT2}, s{sT2}, {GG}")
    a("s_mov_b32 exec_lo, 0xffff0000")
    a("s_mov_b32 exec_hi, 0xffff0000")
    a(f"buffer_store_dwordx4 v[{V0}:{V0+3}], v{vT+1}, s[{S_WS}:{S_WS+3}], s{sT3} offen")
    a(f"buffer_store_dwordx4 v[{V0+4}:{V0+7}], v{vT+1}, s[{S_WS}:{S_WS+3}], s{sT3} offen offset:512")
    a("s_mov_b32 exec_lo, -1")
    a("s_mov_b32 exec_hi, 0")
    a(f"buffer_store_dword v{G0}, v{G0+1}, s[{S_WS}:{S_WS+3}], s{sT2} offen")
    mark(a, 8)
    if P.ON:
        a("s_waitcnt vmcnt(0)")
    mark(a, 9)
    prof_end(a, 0, sWAVE, S_WS)
    a("s_endpgm")


def k1_shuffle(a):
    a("L_k1_shuffle:")
    srd(a, S_W1, 52, 1792 * 1024)
    srd(a, S_B1, 44, 512 * 1024)
    a(f"v_lshlrev_b32 v{vT}, 4, v{vL}")
    a(f"s_mul_i32 s{sXs}, s{sTT}, {112*1024}")
    a(f"s_mul_i32 s{sT0}, s{sWAVE}, {28*1024}")
    a(f"s_add_u32 s{sXs}, s{sXs}, s{sT0}")
    a(f"s_mul_i32 s{sXd}, s{sWAVE}, {28*1088}")
    for r in range(28):
        dma(a, sXd, r * 1088, vT, S_W1, sXs, r * 1024)
    a(f"s_lshl_b32 s{sPs}, s{sTT}, 15")
    a(f"s_lshl_b32 s{sT0}, s{sWAVE}, 13")
    a(f"s_add_u32 s{sPs}, s{sPs}, s{sT0}")
    a(f"s_mul_i32 s{sPd}, s{sWAVE}, {8*1088}")
    a(f"s_add_u32 s{sPd}, s{sPd}, {112*1088}")
    for r in range(8):
        dma(a, sPd, r * 1088, vT, S_B1, sPs, r * 1024)
    B = 2
    a(f"v_lshrrev_b32 v{B}, 5, v{vL}")
    a(f"v_lshlrev_b32 v{B}, 2, v{B}")
    a(f"v_bfe_u32 v{B+1}, v{vL}, 2, 2")
    a(f"v_add_u32 v{B}, v{B}, v{B+1}")
    a(f"v_mul_u32_u24 v{B}, 1088, v{B}")
    a(f"v_and_b32 v{B+1}, 1, v{vL}")
    a(f"v_lshl_add_u32 v{B}, v{B+1}, 5, v{B}")
    a(f"v_bfe_u32 v{B+1}, v{vL}, 4, 1")
    a(f"v_lshl_add_u32 v{B}, v{B+1}, 4, v{B}")
    a(f"v_bfe_u32 v{B+1}, v{vL}, 1, 1")
    a(f"v_lshl_add_u32 v{B}, v{B+1}, 3, v{B}")
    a(f"s_lshl_b32 s{sT0}, s{sWAVE}, 8")
    a(f"v_add_u32 v{B}, s{sT0}, v{B}")
    a(f"v_add_u32 v{B+1}, {4*17408}, v{B}")
    a(f"v_add_u32 v{B+2}, {8*17408}, v{B}")
    a(f"s_mul_i32 s{sFs}, s{sWAVE}, {4*112*1024}")
    a(f"s_mul_i32 s{sT0}, s{sTT}, {7*1024}")
    a(f"s_add_u32 s{sFs}, s{sFs}, s{sT0}")
    a(f"s_add_u32 s{sFs}, s{sFs}, {W2F}")
    a(f"s_lshl_b32 s{sFd}, s{sWAVE}, 17")
    a(f"s_lshl_b32 s{sT0}, s{sTT}, 11")
    a(f"s_add_u32 s{sFd}, s{sFd}, s{sT0}")
    a(f"s_add_u32 s{sFd}, s{sFd}, {WOF}")
    mark(a, 2)
    a("s_waitcnt vmcnt(0)")
    a("s_barrier")
    mark(a, 3)
    R = 20
    frs = [(nb, k) for nb in range(4) for k in range(9)]
    for i0 in range(0, 36, 6):
        for i in range(i0, i0 + 6):
            nb, k = frs[i]
            d = R + 4 * i
            off = (k & 3) * 17408 + nb * 64
            a(f"ds_read_b64_tr_b16 v[{d}:{d+1}], v{B+(k>>2)} offset:{off}")
            a(f"ds_read_b64_tr_b16 v[{d+2}:{d+3}], v{B+(k>>2)} offset:{off+8*1088}")
        a("s_waitcnt lgkmcnt(0)")
        for i in range(i0, i0 + 6):
            nb, k = frs[i]
            d = R + 4 * i
            if k < 7:
                a(f"s_add_u32 s{sT1}, s{sFs}, {nb*112*1024 + k*1024}")
            else:
                a(f"s_add_u32 s{sT1}, s{sFd}, {nb*32*1024 + (k-7)*1024}")
            a(f"buffer_store_dwordx4 v[{d}:{d+3}], v{vT}, s[{S_WS}:{S_WS+3}], s{sT1} offen")
    mark(a, 8)
    if P.ON:
        a("s_waitcnt vmcnt(0)")
    mark(a, 9)
    prof_end(a, 0, sWAVE, S_WS)
    a("s_endpgm")


def k1(a, name):
    a(f".globl {name}\n.p2align 8\n.type {name},@function\n{name}:")
    a("s_cmp_ge_u32 s2, 256")
    a("s_cbranch_scc1 L_k1_end")
    mark(a, 0, real=True)
    mark(a, 1)
    a("s_load_dwordx16 s[36:51], s[0:1], 0")
    a("s_load_dwordx4 s[52:55], s[0:1], 64")
    a("s_load_dwordx2 s[56:57], s[0:1], 96")
    a(f"v_and_b32 v{vL}, 63, v0")
    a("v_lshrrev_b32 v2, 6, v0")
    a("s_and_b32 s3, s2, 7")
    a(f"s_lshr_b32 s{sT0}, s2, 3")
    a(f"v_readfirstlane_b32 s{sWAVE}, v2")
    a(f"s_and_b32 s{sTT}, s{sT0}, 1")
    a("s_lshl_b32 s3, s3, 1")
    a(f"s_add_u32 s{sTT}, s{sTT}, s3")
    a(f"s_lshr_b32 s{sJ}, s{sT0}, 1")
    a(f"s_lshl_b32 s{sTB}, s{sTT}, 2")
    a(f"s_add_u32 s{sTB}, s{sTB}, s{sWAVE}")
    a("s_waitcnt lgkmcnt(0)")
    srd(a, S_X, 36, 2048 * 1024)
    srd(a, S_WQ, 38, 512 * 1024)
    srd(a, S_WS, 56, WS_BYTES)
    a("s_lshl_b32 s68, s2, 13")
    a(f"s_lshl_b32 s69, s{sWAVE}, 11")
    a("s_add_u32 s68, s68, s69")
    a(f"s_add_u32 s68, s68, {OF}")
    a(f"v_lshlrev_b32 v195, 4, v{vL}")
    for r in range(4):
        a(f"v_mov_b32 v{196+r}, -1")
    a(f"buffer_store_dwordx4 v[196:199], v195, s[{S_WS}:{S_WS+3}], s68 offen")
    a(f"buffer_store_dwordx4 v[196:199], v195, s[{S_WS}:{S_WS+3}], s68 offen offset:1024")
    a(f"s_cmp_eq_u32 s{sJ}, 14")
    a("s_cbranch_scc1 L_k1_special")
    a(f"s_cmp_eq_u32 s{sJ}, 15")
    a("s_cbranch_scc1 L_k1_shuffle")
    k1_main(a)
    k1_special(a)
    k1_shuffle(a)
    a("L_k1_end:")
    a("s_endpgm")
```

```python
from asmlib import *

S_WS = 4
sWAVE, sTP, sHG, sT0, sT1, sT2 = 8, 9, 10, 11, 16, 17
sMASK = 12
sIT = 14
sA0, sA1, sW0, sW1 = 20, 21, 22, 23
sTHL, sTHH = 24, 25
sBARM = 15
vL, vKA, vVA, vT = 1, 2, 3, 4
Q0, Q1 = 12, 16
KFR = 20
VFR = 28
PK = 44
SX, SY = 52, 68
O0, O1 = 84, 100
CM = 116
FACC = 12
RING = 76
K2_VGPRS = 220
TB_ = 12
TW = 28
TO = 92
TA = 156
S_OUT = 28
POLL_MAX = 20000
RED = 131072
K2_LDS = RED + 32768
FORCE_FALLBACK = False
import os
EXP = os.environ.get("K2EXP", "")
BAR2_KBL = 7
RED_IT = 5
FFN_PRE = 2


def unit(a, ab, kbl, first_iter_barrier=False):
    C, N = (SX, SY) if ab == 0 else (SY, SX)
    p = kbl & 1
    e = lambda i: a(f"v_exp_f32 v{C+i}, v{C+i}")
    c = lambda k: a(f"v_cvt_pk_bf16_f32 v{PK+k}, v{C+2*k}, v{C+2*k+1}")
    e(0); e(1)
    a(f"v_cvt_pk_bf16_f32 v{PK+7}, v{N+14}, v{N+15}")
    if ab == 0:
        a(mfma(N, KFR + 4 * p, Q1, "0"))
    else:
        a("s_waitcnt lgkmcnt(0)")
        a(mfma(N, KFR + 4 * (1 - p), Q0, "0"))
    e(2); e(3); c(0); e(4); e(5); c(1)
    if ab == 0:
        a(mfma(O1, VFR + 8 * (1 - p) + 4, PK + 4, O1))
        if first_iter_barrier:
            a(f"s_bitcmp1_b32 s{sBARM}, s{sIT}")
            a("s_cbranch_scc0 L_k2_nobar")
            a("s_barrier")
            a("L_k2_nobar:")
        q = 1 - p
        a(f"ds_read_b128 v[{KFR+4*q}:{KFR+4*q+3}], v{vKA} offset:{(kbl+1)*1024}")
        a(f"s_mov_b64 exec, s[{sMASK}:{sMASK+1}]")
        a(f"ds_read_b128 v[{VFR+8*q}:{VFR+8*q+3}], v{vVA} offset:{(kbl+1)*1024}")
        a(f"ds_read_b128 v[{VFR+8*q+4}:{VFR+8*q+7}], v{vVA} offset:{(kbl+1)*1024+512}")
        a("s_mov_b64 exec, -1")
    else:
        a(mfma(O0, VFR + 8 * p + 4, PK + 4, O0))
    e(6); e(7); c(2); e(8); e(9); c(3); e(10); e(11)
    O = O0 if ab == 0 else O1
    a(mfma(O, VFR + 8 * p, PK, O))
    c(4); e(12); e(13); c(5); e(14); e(15); c(6)


def fallback_block(a, Q, O, tag):
    m, t = vT, vT + 1
    a(f"v_mov_b32 v{m}, 0xff800000")
    a(f"v_lshlrev_b32 v{vKA}, 4, v{vL}")
    a(f"s_mov_b32 s{sIT}, 0")
    a(f"L_k2_fb1_{tag}:")
    a(f"ds_read_b128 v[{KFR}:{KFR+3}], v{vKA}")
    a(f"v_add_u32 v{vKA}, 1024, v{vKA}")
    a("s_waitcnt lgkmcnt(0)")
    a(mfma(SX, KFR, Q, "0"))
    a("s_nop 7\ns_nop 7")
    for r in range(8):
        a(f"v_max3_f32 v{m}, v{SX+2*r}, v{SX+2*r+1}, v{m}")
    a(f"s_add_u32 s{sIT}, s{sIT}, 1")
    a(f"s_cmp_lt_u32 s{sIT}, 64")
    a(f"s_cbranch_scc1 L_k2_fb1_{tag}")
    a(f"v_mov_b32 v{t}, v{m}")
    a("s_nop 1")
    a(f"v_permlane32_swap_b32 v{m}, v{t}")
    a("s_nop 1")
    a(f"v_max_f32 v{m}, v{m}, v{t}")
    for r in range(16):
        a(f"v_sub_f32 v{CM+r}, 0, v{m}")
        a(f"v_mov_b32 v{O+r}, 0")
    a(f"v_lshlrev_b32 v{vKA}, 4, v{vL}")
    a(f"v_and_b32 v{vVA}, 15, v{vL}")
    a(f"v_lshrrev_b32 v{t}, 5, v{vL}")
    a(f"v_lshl_add_u32 v{vVA}, v{t}, 4, v{vVA}")
    a(f"v_lshlrev_b32 v{vVA}, 4, v{vVA}")
    a(f"v_add_u32 v{vVA}, 0x10000, v{vVA}")
    a(f"s_mov_b32 s{sIT}, 0")
    a(f"L_k2_fb2_{tag}:")
    a(f"ds_read_b128 v[{KFR}:{KFR+3}], v{vKA}")
    a(f"s_mov_b64 exec, s[{sMASK}:{sMASK+1}]")
    a(f"ds_read_b128 v[{VFR}:{VFR+3}], v{vVA}")
    a(f"ds_read_b128 v[{VFR+4}:{VFR+7}], v{vVA} offset:512")
    a("s_mov_b64 exec, -1")
    a(f"v_add_u32 v{vKA}, 1024, v{vKA}")
    a(f"v_add_u32 v{vVA}, 1024, v{vVA}")
    a("s_waitcnt lgkmcnt(0)")
    a(mfma(SX, KFR, Q, CM))
    a("s_nop 7\ns_nop 7")
    for r in range(16):
        a(f"v_exp_f32 v{SX+r}, v{SX+r}")
    a("s_nop 0")
    for r in range(8):
        a(f"v_cvt_pk_bf16_f32 v{PK+r}, v{SX+2*r}, v{SX+2*r+1}")
    a("s_nop 1")
    a(mfma(O, VFR, PK, O))
    a(mfma(O, VFR + 4, PK + 4, O))
    a(f"s_add_u32 s{sIT}, s{sIT}, 1")
    a(f"s_cmp_lt_u32 s{sIT}, 64")
    a(f"s_cbranch_scc1 L_k2_fb2_{tag}")
    a("s_nop 7\ns_nop 7")


def attention(a):
    a("L_k2_attn:")
    a("s_setprio 2")
    a(f"s_lshl_b32 s{sT0}, s{sHG}, 2")
    a(f"s_add_u32 s{sT0}, s{sT0}, s{sWAVE}")
    a(f"s_lshl_b32 s{sT0}, s{sT0}, 10")
    a(f"s_lshl_b32 s{sT1}, s{sTP}, 16")
    a(f"s_add_u32 s{sT2}, s{sT0}, s{sT1}")
    a(f"s_add_u32 s{sT1}, s{sT2}, 32768")
    a(f"buffer_load_dwordx4 v[{Q0}:{Q0+3}], v{vT}, s[{S_WS}:{S_WS+3}], s{sT2} offen")
    a(f"buffer_load_dwordx4 v[{Q1}:{Q1+3}], v{vT}, s[{S_WS}:{S_WS+3}], s{sT1} offen")
    kv_dma(a)
    a(f"s_mov_b32 s{sMASK}, 0x0000ffff")
    a(f"s_mov_b32 s{sMASK+1}, 0x0000ffff")
    a(f"v_and_b32 v{vT+1}, 27, v{vL}")
    a(f"v_cmp_eq_u32 vcc, 16, v{vT+1}")
    a(f"v_mov_b32 v{vT+2}, 0x3f803f80")
    a(f"v_cndmask_b32 v{vT+1}, 0, v{vT+2}, vcc")
    for r in range(16):
        a(f"v_mov_b32 v{VFR+r}, v{vT+1}")
    for r in range(8):
        a(f"v_mov_b32 v{PK+r}, 0")
    for r in range(16):
        a(f"v_mov_b32 v{O0+r}, 0")
        a(f"v_mov_b32 v{O1+r}, 0")
    a(f"v_mov_b32 v{SY+14}, 0")
    a(f"v_mov_b32 v{SY+15}, 0")
    a(f"v_lshlrev_b32 v{vKA}, 4, v{vL}")
    a(f"v_and_b32 v{vVA}, 15, v{vL}")
    a(f"v_lshrrev_b32 v{vT+1}, 5, v{vL}")
    a(f"v_lshl_add_u32 v{vVA}, v{vT+1}, 4, v{vVA}")
    a(f"v_lshlrev_b32 v{vVA}, 4, v{vVA}")
    a(f"v_add_u32 v{vVA}, 0x10000, v{vVA}")
    a(f"s_mov_b32 s{sIT}, 0")
    a(f"s_mov_b32 s{sBARM}, {1 | (3 << RED_IT)}")
    mark(a, 2)
    a("s_waitcnt vmcnt(0)")
    a("s_barrier")
    mark(a, 3)
    a(f"ds_read_b128 v[{KFR}:{KFR+3}], v{vKA}")
    a(f"s_mov_b64 exec, s[{sMASK}:{sMASK+1}]")
    a(f"ds_read_b128 v[{VFR}:{VFR+3}], v{vVA}")
    a(f"ds_read_b128 v[{VFR+4}:{VFR+7}], v{vVA} offset:512")
    a("s_mov_b64 exec, -1")
    a("s_waitcnt lgkmcnt(0)")
    a(mfma(SX, KFR, Q0, "0"))
    a("s_nop 7\ns_nop 7")
    a("L_k2_loop:")
    for kbl in range(8):
        unit(a, 0, kbl, first_iter_barrier=(kbl == BAR2_KBL))
        if kbl == 7:
            a(f"v_add_u32 v{vKA}, 8192, v{vKA}")
            a(f"v_add_u32 v{vVA}, 8192, v{vVA}")
        unit(a, 1, kbl)
    if P.ON:
        a(f"s_cmp_eq_u32 s{sIT}, 0")
        a("s_cbranch_scc0 L_k2_nomark")
        mark(a, 4)
        a("L_k2_nomark:")
    a(f"s_add_u32 s{sIT}, s{sIT}, 1")
    a(f"s_cmp_lt_u32 s{sIT}, 8")
    a("s_cbranch_scc1 L_k2_loop")
    mark(a, 5)
    a(f"v_cvt_pk_bf16_f32 v{PK+7}, v{SY+14}, v{SY+15}")
    a("s_nop 1")
    a(mfma(O1, VFR + 8 + 4, PK + 4, O1))
    a("s_waitcnt lgkmcnt(0)")
    a("s_nop 7\ns_nop 7")
    a(f"s_mov_b32 s{sTHL}, {fhex(2.0**-30)}")
    a(f"s_mov_b32 s{sTHH}, {fhex(2.0**60)}")
    t = vT + 1
    a(f"v_mul_f32 v{t}, 0, v{O0+8}")
    for r in range(8):
        a(f"v_fma_f32 v{t}, v{O0+r}, 0, v{t}")
    a(f"v_fma_f32 v{t}, v{O1+8}, 0, v{t}")
    for r in range(8):
        a(f"v_fma_f32 v{t}, v{O1+r}, 0, v{t}")
    a(f"v_cmp_u_f32 vcc, v{t}, v{t}")
    a(f"v_min_f32 v{t+1}, v{O0+8}, v{O1+8}")
    a(f"v_max_f32 v{t+2}, v{O0+8}, v{O1+8}")
    a(f"v_cmp_gt_f32 s[26:27], s{sTHL}, v{t+1}")
    a(f"v_cmp_lt_f32 s[28:29], s{sTHH}, v{t+2}")
    a("s_nop 3")
    a("s_or_b64 vcc, vcc, s[26:27]")
    a("s_or_b64 vcc, vcc, s[28:29]")
    if FORCE_FALLBACK:
        a("s_mov_b64 vcc, -1")
    a("s_cbranch_vccz L_k2_norm")
    fallback_block(a, Q0, O0, "a")
    fallback_block(a, Q1, O1, "b")
    a("L_k2_norm:")
    a(f"v_lshlrev_b32 v{vT}, 4, v{vL}")
    for (O, so, pk) in ((O0, sT2, PK), (O1, sT1, PK + 4)):
        a(f"v_rcp_f32 v{t}, v{O+8}")
        a("s_nop 0")
        for r in range(8):
            a(f"v_mul_f32 v{O+r}, v{O+r}, v{t}")
        for r in range(4):
            a(f"v_cvt_pk_bf16_f32 v{pk+r}, v{O+2*r}, v{O+2*r+1}")
    for r in range(8):
        a(f"v_min_u32 v{PK+r}, -2, v{PK+r}")
    a(f"s_add_u32 s{sT2}, s{sT2}, {OF}")
    a(f"s_add_u32 s{sT1}, s{sT1}, {OF}")
    a(f"buffer_store_dwordx4 v[{PK}:{PK+3}], v{vT}, s[{S_WS}:{S_WS+3}], s{sT2} offen sc1")
    a(f"buffer_store_dwordx4 v[{PK+4}:{PK+7}], v{vT}, s[{S_WS}:{S_WS+3}], s{sT1} offen sc1")
    mark(a, 8)
    a("s_waitcnt vmcnt(0)")
    mark(a, 9)
    a("s_barrier")
    a("s_barrier")
    prof_end(a, 1, sWAVE, S_WS)
    a("s_endpgm")


def kv_dma(a):
    a(f"s_lshl_b32 s{sA0}, s{sWAVE}, 10")
    a(f"s_add_u32 s{sA1}, s{sA0}, {KF}")
    for half in range(2):
        off = half * 65536
        a(f"s_add_u32 m0, s{sA0}, {off}" if off else f"s_mov_b32 m0, s{sA0}")
        a(f"s_add_u32 s{sW0}, s{sA1}, {off}")
        a(f"buffer_load_dwordx4 v{vT}, s[{S_WS}:{S_WS+3}], s{sW0} offen lds")


def kv_dma_rest(a):
    a(f"s_sub_u32 s{sA0}, s{sWAVE}, 4")
    a(f"s_lshl_b32 s{sA0}, s{sA0}, 11")
    a(f"s_add_u32 s{sA1}, s{sA0}, {KF}")
    for m in range(1, 8):
        for half in range(2):
            for d in range(2):
                off = m * 8192 + half * 65536 + d * 1024
                a(f"s_add_u32 m0, s{sA0}, {off}")
                a(f"s_add_u32 s{sW0}, s{sA1}, {off}")
                a(f"buffer_load_dwordx4 v{vT}, s[{S_WS}:{S_WS+3}], s{sW0} offen lds")


def ffn2(a):
    a("L_k2_ffn:")
    kv_dma(a)
    a("s_waitcnt vmcnt(0)")
    a("s_barrier")
    kv_dma_rest(a)
    a(f"s_sub_u32 s{sT0}, s{sWAVE}, 4")
    a(f"s_mul_i32 s{sT1}, s{sT0}, {28*1024}")
    a(f"s_mul_i32 s{sA0}, s{sTP}, {2*112*1024}")
    a(f"s_add_u32 s{sA0}, s{sA0}, s{sT1}")
    a(f"s_add_u32 s{sA0}, s{sA0}, {AF}")
    a(f"s_add_u32 s{sA1}, s{sA0}, {112*1024}")
    a(f"s_mul_i32 s{sW0}, s{sHG}, {2*112*1024}")
    a(f"s_add_u32 s{sW0}, s{sW0}, s{sT1}")
    a(f"s_add_u32 s{sW0}, s{sW0}, {W2F}")
    a(f"s_add_u32 s{sW1}, s{sW0}, {112*1024}")

    def loads(ks):
        b = RING + (ks & 7) * 16
        if ks and (ks & 3) == 0:
            for s in (sA0, sA1, sW0, sW1):
                a(f"s_add_u32 s{s}, s{s}, 4096")
        o = (ks & 3) * 1024
        for i, s in enumerate((sW0, sW1, sA0, sA1)):
            a(f"buffer_load_dwordx4 v[{b+4*i}:{b+4*i+3}], v{vT}, s[{S_WS}:{S_WS+3}], s{s} offen offset:{o}")

    mark(a, 2)
    for ks in range(FFN_PRE):
        loads(ks)
    a(f"s_waitcnt vmcnt({4*FFN_PRE})")
    a("s_barrier")
    mark(a, 3)
    for ks in range(FFN_PRE, 8):
        loads(ks)
    for ks in range(28):
        b = RING + (ks & 7) * 16
        left = min(27 - ks, 7) * 4
        a(f"s_waitcnt vmcnt({left})")
        if ks == 0:
            mark(a, 4)
        for ni in range(2):
            for ti in range(2):
                acc = FACC + 16 * (2 * ni + ti)
                a(mfma(acc, b + 4 * ni, b + 8 + 4 * ti, "0" if ks == 0 else acc))
        if ks + 8 < 28:
            loads(ks + 8)
    a("s_nop 7\ns_nop 7")
    mark(a, 5)
    a(f"v_add_u32 v{vT+1}, {RED}, v{vT}")
    a(f"s_sub_u32 s{sT0}, s{sWAVE}, 4")
    for v in range(4):
        if v < 3:
            a(f"s_cmp_lg_u32 s{sT0}, {v}")
            a(f"s_cbranch_scc1 L_k2_red{v+1}")
        ti, ni = v & 1, v >> 1
        for j in range(2):
            src = FACC + 16 * (2 * j + (1 - ti))
            for r4 in range(4):
                a(f"ds_write_b128 v{vT+1}, v[{src+4*r4}:{src+4*r4+3}] offset:{v*8192+j*4096+r4*1024}")
        a("s_waitcnt lgkmcnt(0)")
        a("s_barrier")
        for j in range(2):
            for r4 in range(4):
                d = RING + 16 * j + 4 * r4
                a(f"ds_read_b128 v[{d}:{d+3}], v{vT+1} offset:{(v^1)*8192+j*4096+r4*1024}")
        jo = 1 - ni
        a(f"s_waitcnt lgkmcnt({0})")
        qs = FACC + 16 * (2 * jo + ti)
        qk = FACC + 16 * (2 * ni + ti)
        for r in range(16):
            a(f"v_add_f32 v{qs+r}, v{qs+r}, v{RING+16*jo+r}")
        for r4 in range(4):
            a(f"ds_write_b128 v{vT+1}, v[{qs+4*r4}:{qs+4*r4+3}] offset:{(v^1)*8192+r4*1024}")
        for r in range(16):
            a(f"v_add_f32 v{qk+r}, v{qk+r}, v{RING+16*ni+r}")
        a("s_waitcnt lgkmcnt(0)")
        a("s_barrier")
        for r4 in range(4):
            d = RING + 4 * r4
            a(f"ds_read_b128 v[{d}:{d+3}], v{vT+1} offset:{(v^3)*8192+r4*1024}")
        a("s_waitcnt lgkmcnt(0)")
        for r in range(16):
            a(f"v_add_f32 v{TB_+r}, v{qk+r}, v{RING+r}")
        if v < 3:
            a("s_branch L_k2_fend")
            a(f"L_k2_red{v+1}:")
    a("L_k2_fend:")
    tail(a)


def tail(a):
    sV, sNI, sTI, sTB, sNB, sO0, sO1, sSO, sCNT = 16, 17, 20, 21, 22, 23, 24, 25, 14
    vG, vOUT, vW1, vW2, vW3, vRD, vM = 5, 6, 7, 8, 9, 10, 11
    srd(a, S_OUT, 26, 2048 * 1024)
    a(f"s_sub_u32 s{sV}, s{sWAVE}, 4")
    a(f"s_lshr_b32 s{sNI}, s{sV}, 1")
    a(f"s_and_b32 s{sTI}, s{sV}, 1")
    a(f"s_lshl_b32 s{sT0}, s{sHG}, 16")
    a(f"s_lshl_b32 s{sO0}, s{sV}, 13")
    a(f"s_add_u32 s{sT0}, s{sT0}, s{sO0}")
    a(f"s_add_u32 s{sT0}, s{sT0}, {WOF}")
    a(f"s_lshl_b32 s{sO1}, s{sNI}, 15")
    a(f"s_add_u32 s{sTB}, s{sT0}, s{sO1}")
    a(f"s_xor_b32 s{sO1}, s{sO1}, 32768")
    a(f"s_add_u32 s{sNB}, s{sT0}, s{sO1}")
    for k in range(8):
        if k == 4:
            a(f"s_add_u32 s{sTB}, s{sTB}, 4096")
            a(f"s_add_u32 s{sNB}, s{sNB}, 4096")
        for x, s_ in enumerate((sTB, sNB)):
            d = TW + 8 * k + 4 * x
            a(f"buffer_load_dwordx4 v[{d}:{d+3}], v{vT}, s[{S_WS}:{S_WS+3}], s{s_} offen offset:{(k&3)*1024}")
    a(f"s_lshl_b32 s{sT0}, s{sTP}, 16")
    a(f"s_add_u32 s{sT0}, s{sT0}, s{sO0}")
    a(f"s_add_u32 s{sT0}, s{sT0}, {OF}")
    a(f"s_lshl_b32 s{sO1}, s{sTI}, 15")
    a(f"s_add_u32 s{sO0}, s{sT0}, s{sO1}")
    a(f"s_xor_b32 s{sO1}, s{sO1}, 32768")
    a(f"s_add_u32 s{sO1}, s{sT0}, s{sO1}")
    a(f"s_lshl_b32 s{sTB}, s{sTP}, 1")
    a(f"s_add_u32 s{sTB}, s{sTB}, s{sTI}")
    a(f"s_lshl_b32 s{sNB}, s{sHG}, 1")
    a(f"s_add_u32 s{sNB}, s{sNB}, s{sNI}")
    a(f"v_and_b32 v{vOUT}, 31, v{vL}")
    a(f"v_lshlrev_b32 v{vM}, 2, v{vOUT}")
    a(f"s_lshl_b32 s{sT0}, s{sTB}, 7")
    a(f"s_add_u32 s{sT0}, s{sT0}, {GG}")
    a(f"buffer_load_dword v{vG}, v{vM}, s[{S_WS}:{S_WS+3}], s{sT0} offen")
    a(f"v_lshlrev_b32 v{vOUT}, 10, v{vOUT}")
    a(f"v_lshrrev_b32 v{vRD}, 5, v{vL}")
    a(f"v_lshl_add_u32 v{vOUT}, v{vRD}, 5, v{vOUT}")
    a(f"s_lshl_b32 s{sSO}, s{sTB}, 15")
    a(f"s_lshl_b32 s{sT0}, s{sNB}, 6")
    a(f"s_add_u32 s{sSO}, s{sSO}, s{sT0}")
    for j, w in ((1, vW1), (2, vW2), (3, vW3)):
        a(f"s_xor_b32 s{sT0}, s{sV}, {j}")
        a(f"s_mul_i32 s{sT0}, s{sT0}, 12288")
        a(f"s_add_u32 s{sT0}, s{sT0}, {(j-1)*4096}")
        a(f"v_add_u32 v{w}, s{sT0}, v{vT}")
    a(f"s_mul_i32 s{sT0}, s{sV}, 12288")
    a(f"v_add_u32 v{vRD}, s{sT0}, v{vT}")
    a(f"s_add_u32 s{sTB}, s{sO0}, 4096")
    a(f"s_add_u32 s{sNB}, s{sO1}, 4096")
    a(f"s_mov_b32 s{sCNT}, 0")
    a("s_waitcnt vmcnt(0)")
    a("s_barrier")
    mark(a, 6)
    a("L_k2_poll:")
    for k in range(8):
        for y in range(2):
            s_ = (sO0, sO1)[y] if k < 4 else (sTB, sNB)[y]
            d = TO + 8 * k + 4 * y
            a(f"buffer_load_dwordx4 v[{d}:{d+3}], v{vT}, s[{S_WS}:{S_WS+3}], s{s_} offen offset:{(k&3)*1024} sc1")
    for k in range(8):
        a(f"s_waitcnt vmcnt({14-2*k})")
        for x in range(2):
            for y in range(2):
                acc = TA + 16 * (2 * x + y)
                a(mfma(acc, TW + 8 * k + 4 * x, TO + 8 * k + 4 * y, "0" if k == 0 else acc))
        d = TO + 8 * k
        if k == 0:
            a(f"v_max3_u32 v{vM}, v{d}, v{d+1}, v{d+2}")
            a(f"v_max_u32 v{vM}, v{d+3}, v{vM}")
            a(f"v_max3_u32 v{vM}, v{d+4}, v{d+5}, v{vM}")
            a(f"v_max3_u32 v{vM}, v{d+6}, v{d+7}, v{vM}")
        else:
            for i in range(4):
                a(f"v_max3_u32 v{vM}, v{d+2*i}, v{d+2*i+1}, v{vM}")
    a(f"v_cmp_eq_u32 vcc, -1, v{vM}")
    a(f"s_add_u32 s{sCNT}, s{sCNT}, 1")
    a("s_nop 1")
    a("s_cbranch_vccz L_k2_got")
    a("s_sleep 1")
    a(f"s_cmp_lt_u32 s{sCNT}, {POLL_MAX}")
    a("s_cbranch_scc1 L_k2_poll")
    a("L_k2_got:")
    mark(a, 7)
    a("s_nop 7")
    for j, w in ((1, vW1), (2, vW2), (3, vW3)):
        for r4 in range(4):
            s_ = TA + 16 * j + 4 * r4
            a(f"ds_write_b128 v{w}, v[{s_}:{s_+3}] offset:{r4*1024}")
    a(f"v_sub_f32 v{vM}, 1.0, v{vG}")
    for r in range(16):
        a(f"v_mul_f32 v{TB_+r}, v{vM}, v{TB_+r}")
    a("s_waitcnt lgkmcnt(0)")
    a("s_barrier")
    mark(a, 10)
    for j in range(3):
        for r4 in range(4):
            d = TW + 16 * j + 4 * r4
            a(f"ds_read_b128 v[{d}:{d+3}], v{vRD} offset:{j*4096+r4*1024}")
    for j in range(3):
        a(f"s_waitcnt lgkmcnt({8-4*j})")
        for r in range(16):
            a(f"v_add_f32 v{TA+r}, v{TA+r}, v{TW+16*j+r}")
    for r in range(16):
        a(f"v_fma_f32 v{TA+r}, v{vG}, v{TA+r}, v{TB_+r}")
    for r in range(8):
        a(f"v_cvt_pk_bf16_f32 v{TW+r}, v{TA+2*r}, v{TA+2*r+1}")
    a(f"buffer_store_dwordx4 v[{TW}:{TW+3}], v{vOUT}, s[{S_OUT}:{S_OUT+3}], s{sSO} offen")
    a(f"buffer_store_dwordx4 v[{TW+4}:{TW+7}], v{vOUT}, s[{S_OUT}:{S_OUT+3}], s{sSO} offen offset:16")
    mark(a, 8)
    if P.ON:
        a("s_waitcnt vmcnt(0)")
        a(f"s_mov_b32 s92, s{sCNT}")
    mark(a, 9)
    prof_end(a, 1, sWAVE, S_WS)
    a("s_endpgm")


def tile_map(a):
    a("s_and_b32 s3, s2, 7")
    a(f"s_lshr_b32 s{sT0}, s2, 3")
    a(f"s_and_b32 s{sHG}, s{sT0}, 7")
    a(f"s_lshr_b32 s{sT0}, s{sT0}, 3")
    a("s_lshl_b32 s3, s3, 2")
    a(f"s_add_u32 s{sTP}, s3, s{sT0}")


def k2(a, name):
    a(f".globl {name}\n.p2align 8\n.type {name},@function\n{name}:")
    a("s_cmp_ge_u32 s2, 256")
    a("s_cbranch_scc1 L_k2_end")
    mark(a, 0, real=True)
    mark(a, 1)
    a("s_load_dwordx2 s[18:19], s[0:1], 96")
    a("s_load_dwordx2 s[26:27], s[0:1], 80")
    a(f"v_and_b32 v{vL}, 63, v0")
    a("v_lshrrev_b32 v2, 6, v0")
    tile_map(a)
    a(f"v_readfirstlane_b32 s{sWAVE}, v2")
    a(f"v_lshlrev_b32 v{vT}, 4, v{vL}")
    a("s_waitcnt lgkmcnt(0)")
    srd(a, S_WS, 18, WS_BYTES)
    a(f"s_cmp_ge_u32 s{sWAVE}, 4")
    a("s_cbranch_scc1 L_k2_ffn")
    attention(a)
    ffn2(a)
    a("L_k2_end:")
    a("s_endpgm")


def k3(a, name):
    S_OUT = 12
    FR = 20
    ACC = 148
    BB = 212
    vG = 220
    a(f".globl {name}\n.p2align 8\n.type {name},@function\n{name}:")
    a("s_cmp_ge_u32 s2, 256")
    a("s_cbranch_scc1 L_k3_end")
    mark(a, 0, real=True)
    mark(a, 1)
    a("s_load_dwordx2 s[18:19], s[0:1], 96")
    a("s_load_dwordx2 s[26:27], s[0:1], 80")
    a(f"v_and_b32 v{vL}, 63, v0")
    a("v_lshrrev_b32 v2, 6, v0")
    tile_map(a)
    a(f"v_readfirstlane_b32 s{sWAVE}, v2")
    a(f"v_lshlrev_b32 v{vT}, 4, v{vL}")
    a("s_waitcnt lgkmcnt(0)")
    srd(a, S_WS, 18, WS_BYTES)
    srd(a, S_OUT, 26, 2048 * 1024)
    a(f"s_lshl_b32 s{sT0}, s{sWAVE}, 13")
    a(f"s_lshl_b32 s{sA0}, s{sTP}, 16")
    a(f"s_add_u32 s{sA0}, s{sA0}, s{sT0}")
    a(f"s_add_u32 s{sA0}, s{sA0}, {OF}")
    a(f"s_add_u32 s{sA1}, s{sA0}, 32768")
    a(f"s_lshl_b32 s{sW0}, s{sHG}, 16")
    a(f"s_add_u32 s{sW0}, s{sW0}, s{sT0}")
    a(f"s_add_u32 s{sW0}, s{sW0}, {WOF}")
    a(f"s_add_u32 s{sW1}, s{sW0}, 32768")
    for k in range(8):
        b = FR + 16 * k
        if k == 4:
            for s in (sA0, sA1, sW0, sW1):
                a(f"s_add_u32 s{s}, s{s}, 4096")
        o = (k & 3) * 1024
        for i, s in enumerate((sW0, sW1, sA0, sA1)):
            sc = " sc1" if ("S" in EXP and i >= 2) else ""
            a(f"buffer_load_dwordx4 v[{b+4*i}:{b+4*i+3}], v{vT}, s[{S_WS}:{S_WS+3}], s{s} offen offset:{o}{sc}")
    sTB, sNB = 28, 29
    a(f"s_and_b32 s{sT0}, s{sWAVE}, 1")
    a(f"s_lshl_b32 s{sTB}, s{sTP}, 1")
    a(f"s_add_u32 s{sTB}, s{sTB}, s{sT0}")
    a(f"s_lshr_b32 s{sT0}, s{sWAVE}, 1")
    a(f"s_lshl_b32 s{sNB}, s{sHG}, 1")
    a(f"s_add_u32 s{sNB}, s{sNB}, s{sT0}")
    a(f"s_lshl_b32 s{sT0}, s{sTB}, 15")
    a(f"s_lshl_b32 s{sT1}, s{sNB}, 11")
    a(f"s_add_u32 s{sT0}, s{sT0}, s{sT1}")
    a(f"s_add_u32 s{sT0}, s{sT0}, {BF}")
    a(f"buffer_load_dwordx4 v[{BB}:{BB+3}], v{vT}, s[{S_WS}:{S_WS+3}], s{sT0} offen")
    a(f"buffer_load_dwordx4 v[{BB+4}:{BB+7}], v{vT}, s[{S_WS}:{S_WS+3}], s{sT0} offen offset:1024")
    a(f"v_and_b32 v{vT+1}, 31, v{vL}")
    a(f"v_lshlrev_b32 v{vT+2}, 2, v{vT+1}")
    a(f"s_lshl_b32 s{sT1}, s{sTB}, 7")
    a(f"s_add_u32 s{sT1}, s{sT1}, {GG}")
    a(f"buffer_load_dword v{vG}, v{vT+2}, s[{S_WS}:{S_WS+3}], s{sT1} offen")
    a(f"v_lshlrev_b32 v{vT+1}, 10, v{vT+1}")
    a(f"v_lshrrev_b32 v{vT+2}, 5, v{vL}")
    a(f"v_lshl_add_u32 v{vT+1}, v{vT+2}, 5, v{vT+1}")
    a(f"s_lshl_b32 s{sT2}, s{sTB}, 15")
    a(f"s_lshl_b32 s{sT0}, s{sNB}, 6")
    a(f"s_add_u32 s{sT2}, s{sT2}, s{sT0}")
    mark(a, 2)
    for k in range(8):
        b = FR + 16 * k
        a(f"s_waitcnt vmcnt({(7-k)*4+3})")
        if k == 0:
            mark(a, 3)
        for ni in range(2):
            for ti in range(2):
                acc = ACC + 16 * (2 * ni + ti)
                a(mfma(acc, b + 4 * ni, b + 8 + 4 * ti, "0" if k == 0 else acc))
    a("s_nop 7\ns_nop 7")
    mark(a, 4)
    a(f"s_lshl_b32 s{sT0}, s{sWAVE}, 14")
    a(f"v_add_u32 v{vT+2}, s{sT0}, v{vT}")
    for q in range(4):
        for r4 in range(4):
            s = ACC + 16 * q + 4 * r4
            a(f"ds_write_b128 v{vT+2}, v[{s}:{s+3}] offset:{q*4096+r4*1024}")
    a(f"s_lshl_b32 s{sT0}, s{sWAVE}, 12")
    a(f"v_add_u32 v{vT+2}, s{sT0}, v{vT}")
    a("s_waitcnt lgkmcnt(0)")
    a("s_barrier")
    for w in range(4):
        for r4 in range(4):
            d = FR + 16 * w + 4 * r4
            a(f"ds_read_b128 v[{d}:{d+3}], v{vT+2} offset:{w*16384+r4*1024}")
    a("s_waitcnt vmcnt(0)")
    a(f"v_sub_f32 v{vG+1}, 1.0, v{vG}")
    for r in range(8):
        a(f"v_lshlrev_b32 v{ACC+2*r}, 16, v{BB+r}")
        a(f"v_and_b32 v{ACC+2*r+1}, 0xffff0000, v{BB+r}")
    a("s_waitcnt lgkmcnt(0)")
    for r in range(16):
        a(f"v_add_f32 v{FR+r}, v{FR+r}, v{FR+16+r}")
        a(f"v_add_f32 v{FR+32+r}, v{FR+32+r}, v{FR+48+r}")
    for r in range(16):
        a(f"v_add_f32 v{FR+r}, v{FR+r}, v{FR+32+r}")
    for r in range(16):
        a(f"v_mul_f32 v{FR+r}, v{vG}, v{FR+r}")
    for r in range(16):
        a(f"v_fma_f32 v{FR+r}, v{vG+1}, v{ACC+r}, v{FR+r}")
    for r in range(8):
        a(f"v_cvt_pk_bf16_f32 v{FR+16+r}, v{FR+2*r}, v{FR+2*r+1}")
    a(f"buffer_store_dwordx4 v[{FR+16}:{FR+19}], v{vT+1}, s[{S_OUT}:{S_OUT+3}], s{sT2} offen")
    a(f"buffer_store_dwordx4 v[{FR+20}:{FR+23}], v{vT+1}, s[{S_OUT}:{S_OUT+3}], s{sT2} offen offset:16")
    mark(a, 8)
    if P.ON:
        a("s_waitcnt vmcnt(0)")
    mark(a, 9)
    prof_end(a, 2, sWAVE, S_WS)
    a("L_k3_end:")
    a("s_endpgm")
K3_VGPRS = 224
K3_LDS = 65536
```

```python
import sys, os
sys.path.insert(0, os.path.dirname(os.path.abspath(__file__)))
from asmlib import *
import k1 as K1
import importlib
K2 = importlib.import_module(os.environ.get('K2MOD', 'k2'))

NAME = "gated_mix__grouped_kv_mqa__dense_activation_mish__prompt"
REF = f"cdna_kernels/{NAME}.s.ref"

def build():
    hdr = []
    for line in open(REF).read().split("\n"):
        if line.startswith("; Override launch") or line.startswith("; grid=ceil") or line.startswith("; @launch"):
            continue
        if not line.startswith(";"):
            break
        hdr.append(line)
    hdr.append(f"; @launch kernel=gm_k1_kernel grid=(256,1,1) block=(256,1,1) lds={K1.K1_LDS}")
    hdr.append(f"; @launch kernel=gm_k2_kernel grid=(256,1,1) block=(512,1,1) lds={K2.K2_LDS}")
    a = A()
    a('.amdgcn_target "amdgcn-amd-amdhsa--gfx950"')
    a(".text")
    K1.k1(a, "gm_k1_kernel")
    K2.k2(a, "gm_k2_kernel")
    a('.section .rodata,"a"')
    t = a.text()
    for n, v in (("gm_k1_kernel", K1.K1_VGPRS), ("gm_k2_kernel", K2.K2_VGPRS)):
        t += ".p2align 6\n" + desc(n, v)
    return "\n".join(hdr) + "\n" + t

if __name__ == "__main__":
    out = sys.argv[1] if len(sys.argv) > 1 else f"cdna_kernels/{NAME}.s"
    opts = sys.argv[2:]
    if "fb" in opts:
        K2.FORCE_FALLBACK = True
    if "prof" in opts:
        P.ON = True
    open(out, "w").write(build())
    print("wrote", out)
```
